```python
import torch

def _softmax(x, axis=-1):
    return torch.softmax(x, dim=axis)
def _gelu(x):
    return torch.nn.functional.gelu(x, approximate="tanh")
def _silu(x):
    return torch.nn.functional.silu(x)
def _sigmoid(x):
    return torch.sigmoid(x)
def _layernorm(x, axis=-1, eps=1e-5):
    m = x.mean(dim=axis, keepdim=True)
    v = x.var(dim=axis, keepdim=True, unbiased=False)
    return (x - m) / torch.sqrt(v + eps)
def _scatter_add(tgt, idx, src, axis=0):
    return tgt.clone().index_add_(axis, idx, src)
def _segment_sum(src, seg, n):
    out = torch.zeros((n,) + src.shape[1:], dtype=src.dtype)
    return out.index_add_(0, seg, src)
def _pad(x, pw):
    flat = tuple(v for pair in reversed(pw) for v in pair)
    return torch.nn.functional.pad(x, flat)

kernel_name = 'concat_heads__mha_block_cached__gqa_block_cached__near_ridge'

def setup_inputs():

    _w = (lambda a: (lambda t: t.to(torch.bfloat16) if t.is_floating_point() else t)(torch.as_tensor(a)))
    def _A_setup():
        B, Sq, D = 16, 192, 640
        H, Sk, Dh = 32, 512, 128
        return {
            "x": _w((lambda *s: torch.randn(*s, dtype=torch.bfloat16) * 0.8)(B, Sq, D)),
            "k_cache": _w((lambda *s: torch.randn(*s, dtype=torch.bfloat16) * 0.8)(B, H, Sk, Dh)),
            "v_cache": _w((lambda *s: torch.randn(*s, dtype=torch.bfloat16) * 0.05)(B, H, Sk, Dh)),
            "wq": _w((lambda *s: torch.randn(*s, dtype=torch.bfloat16) * 0.8)(D, H * Dh) * (D ** -0.5)),
            "wo": _w((lambda *s: torch.randn(*s, dtype=torch.bfloat16) * 0.05)(H * Dh, D) * ((H * Dh) ** -0.5)),
        }
    _A_in = _A_setup()

    def _B_setup():
        B, Sq, D = 16, 192, 640
        Hq, Hkv, Sk, Dh = 32, 32, 512, 128
        assert Hq % Hkv == 0, (Hq, Hkv)
        return {
            "x": _w((lambda *s: torch.randn(*s, dtype=torch.bfloat16) * 0.8)(B, Sq, D)),
            "k_cache": _w((lambda *s: torch.randn(*s, dtype=torch.bfloat16) * 0.8)(B, Hkv, Sk, Dh)),
            "v_cache": _w((lambda *s: torch.randn(*s, dtype=torch.bfloat16) * 0.05)(B, Hkv, Sk, Dh)),
            "wq": _w((lambda *s: torch.randn(*s, dtype=torch.bfloat16) * 0.8)(D, Hq * Dh) * (D ** -0.5)),
            "wo": _w((lambda *s: torch.randn(*s, dtype=torch.bfloat16) * 0.05)(Hq * Dh, D) * ((Hq * Dh) ** -0.5)),
        }
    _B_in = _B_setup()

    return {
        "A_x": _A_in["x"],
        "A_k_cache": _A_in["k_cache"],
        "A_v_cache": _A_in["v_cache"],
        "A_wq": _A_in["wq"],
        "A_wo": _A_in["wo"],
        "B_x": _B_in["x"],
        "B_k_cache": _B_in["k_cache"],
        "B_v_cache": _B_in["v_cache"],
        "B_wq": _B_in["wq"],
        "B_wo": _B_in["wo"],
    }

def reference(A_x, A_k_cache, A_v_cache, A_wq, A_wo, B_x, B_k_cache, B_v_cache, B_wq, B_wo):
    def _A_ref(x, k_cache, v_cache, wq, wo):
        B, Sq, D = x.shape
        H, Dh = 32, 128
        q = (lambda x, *d: x.permute(*d))((x @ wq).reshape(B, Sq, H, Dh), 0, 2, 1, 3)
        scores = torch.einsum("bhqd,bhkd->bhqk", q, k_cache) * (Dh ** -0.5)
        p = _softmax(scores, axis=-1)
        o = torch.einsum("bhqk,bhkd->bhqd", p, v_cache)
        return (lambda x, *d: x.permute(*d))(o, 0, 2, 1, 3).reshape(B, Sq, H * Dh) @ wo

    def _B_ref(x, k_cache, v_cache, wq, wo):
        B, Sq, D = x.shape
        Hq, Dh = 32, 128
        Hkv = k_cache.shape[1]
        rep = Hq // Hkv
        q = (lambda x, *d: x.permute(*d))((x @ wq).reshape(B, Sq, Hq, Dh), 0, 2, 1, 3)
        k = (lambda x, n, axis: torch.repeat_interleave(x, n, dim=axis))(k_cache, rep, axis=1)
        v = (lambda x, n, axis: torch.repeat_interleave(x, n, dim=axis))(v_cache, rep, axis=1)
        scores = torch.einsum("bhqd,bhkd->bhqk", q, k) * (Dh ** -0.5)
        p = _softmax(scores, axis=-1)
        o = torch.einsum("bhqk,bhkd->bhqd", p, v)
        return (lambda x, *d: x.permute(*d))(o, 0, 2, 1, 3).reshape(B, Sq, Hq * Dh) @ wo

    a = _A_ref(A_x, A_k_cache, A_v_cache, A_wq, A_wo)
    b = _B_ref(B_x, B_k_cache, B_v_cache, B_wq, B_wo)
    return torch.concatenate([a, b], axis=-1)
```

```python
import re

_REG = re.compile(r"^(-|\|)?(v|a|s)(\d+)\|?$")
_RNG = re.compile(r"^(v|a|s)\[(\d+):(\d+)\]$")

TRANS = ("v_exp_f32", "v_log_f32", "v_rcp_f32", "v_rsq_f32", "v_sqrt_f32", "v_sin_f32", "v_cos_f32")


def regs_of(op):
    op = op.strip()
    m = _REG.match(op)
    if m:
        return {(m.group(2), int(m.group(3)))}
    m = _RNG.match(op)
    if m:
        return {(m.group(1), i) for i in range(int(m.group(2)), int(m.group(3)) + 1)}
    if op.startswith("abs(") and op.endswith(")"):
        return regs_of(op[4:-1])
    if op == "vcc":
        return {("s", "vcc")}
    if op == "m0":
        return {("s", "m0")}
    if op == "exec":
        return {("s", "exec")}
    return set()


class Ins:
    def __init__(self, text, tag=None):
        self.text = text
        self.tag = tag
        body = text.split(";")[0].strip()
        self.label = body.endswith(":") or body.startswith(".") or body == ""
        self.w = set()
        self.r = set()
        self.kind = "none"
        self.mn = ""
        if self.label:
            return
        parts = body.split(None, 1)
        mn = parts[0]
        self.mn = mn
        rest = parts[1] if len(parts) > 1 else ""
        ops = [o.strip() for o in rest.split(",")] if rest else []
        mods = ""
        if ops:
            last = ops[-1].split(None, 1)
            ops[-1] = last[0]
            mods = last[1] if len(last) > 1 else ""
        self.ops = ops
        self.mods = mods
        if mn.startswith("v_mfma") or mn.startswith("v_smfmac"):
            self.kind = "mfma"
            self.D = regs_of(ops[0]); self.A = regs_of(ops[1]); self.B = regs_of(ops[2])
            if mn.startswith("v_smfmac"):
                self.C = set(self.D); self.A |= regs_of(ops[3])
            else:
                self.C = regs_of(ops[3])
            self.w = set(self.D); self.r = self.A | self.B | self.C
            self.passes = 8 if "32x32" in mn else 4
        elif mn.startswith("v_"):
            self.kind = "valu"
            self.trans = any(mn.startswith(t) for t in TRANS)
            self.w = regs_of(ops[0])
            for o in ops[1:]:
                self.r |= regs_of(o)
            if mn.startswith("v_permlane"):
                self.w |= regs_of(ops[1]); self.r |= regs_of(ops[0])
            if mn.startswith("v_fmac") or mn.startswith("v_writelane") or "dot2c" in mn:
                self.r |= regs_of(ops[0])
            if "_dpp" in mn or "row_" in mods or "quad_perm" in mods:
                self.dpp = True
                self.r |= regs_of(ops[0])
            if mn.startswith("v_add_co") or mn.startswith("v_addc_co"):
                self.w |= regs_of(ops[1])
        elif mn.startswith("ds_read") or mn.startswith("ds_bpermute") or mn.startswith("ds_swizzle"):
            self.kind = "ds"; self.load = True
            self.w = regs_of(ops[0])
            for o in ops[1:]:
                self.r |= regs_of(o)
        elif mn.startswith("ds_"):
            self.kind = "ds"; self.load = False
            for o in ops:
                self.r |= regs_of(o)
        elif mn.startswith("buffer_") or mn.startswith("global_"):
            self.kind = "vmem"
            self.lds = " lds" in (" " + mods) or "_lds_" in mn
            self.store = "store" in mn or ("atomic" in mn and "sc0" not in mods)
            self.data = set()
            if mn in ("buffer_inv", "buffer_wbl2"):
                self.load = False; self.store = False
            elif self.lds:
                self.load = False
                for o in ops:
                    self.r |= regs_of(o)
                self.r |= {("s", "m0")}
            elif self.store:
                self.load = False
                for o in ops:
                    self.r |= regs_of(o)
                self.data = regs_of(ops[0]) if mn.startswith("buffer_") else regs_of(ops[1])
            else:
                self.load = True
                self.w = regs_of(ops[0])
                for o in ops[1:]:
                    self.r |= regs_of(o)
        elif mn.startswith("s_"):
            self.kind = "salu"
            if mn == "s_waitcnt":
                self.kind = "wait"
                m = re.search(r"vmcnt\((\d+)\)", body); self.vm = int(m.group(1)) if m else None
                m = re.search(r"lgkmcnt\((\d+)\)", body); self.lgkm = int(m.group(1)) if m else None
            elif mn == "s_nop":
                self.kind = "nop"; self.n = int(ops[0], 0) + 1
            elif mn.startswith("s_load") or mn.startswith("s_memtime") or mn.startswith("s_memrealtime"):
                self.kind = "smem"
                self.w = regs_of(ops[0])
                for o in ops[1:]:
                    self.r |= regs_of(o)
            elif mn.startswith("s_cmp") or mn.startswith("s_cbranch") or mn.startswith("s_branch") or mn in (
                    "s_barrier", "s_endpgm", "s_setprio", "s_sleep"):
                for o in ops:
                    self.r |= regs_of(o)
            else:
                self.w = regs_of(ops[0])
                for o in ops[1:]:
                    self.r |= regs_of(o)
                if mn.startswith("s_addk") or mn.startswith("s_mulk"):
                    self.r |= regs_of(ops[0])
                if "saveexec" in mn:
                    self.w |= {("s", "exec")}
        else:
            raise ValueError("unknown instruction: " + text)

    def states(self):
        if self.label:
            return 0
        if self.kind == "nop":
            return self.n
        return 1


def required_gap(p, c):
    need = 0
    if p.kind == "valu":
        vw = {x for x in p.w if x[0] in "va"}
        sw = {x for x in p.w if x[0] == "s"}
        if c.kind == "mfma" and vw & c.r:
            need = max(need, 2)
        if c.kind == "valu":
            if p.trans and not c.trans and vw & c.r:
                need = max(need, 1)
            if p.trans and c.trans and vw & c.r:
                need = max(need, 1)
            if (c.mn.startswith("v_readlane") or c.mn.startswith("v_readfirstlane")) and vw & c.r:
                need = max(need, 1)
            if (c.mn.startswith("v_permlane") or getattr(c, "dpp", False)) and vw & c.r:
                need = max(need, 2)
            if sw & c.r:
                need = max(need, 4 if ("lane" in c.mn and not c.mn.startswith("v_readfirst")) else 2)
        if c.kind in ("vmem", "ds") and p.trans and vw & c.r:
            need = max(need, 1)
        if c.kind == "vmem" and sw & c.r:
            need = max(need, 5)
        if c.kind in ("salu", "smem") and sw & c.r:
            need = max(need, 1)
        if ("s", "exec") in p.w and c.kind == "mfma":
            need = max(need, 4)
    if p.kind == "mfma":
        big = {4: 8, 8: 12}[p.passes]
        if c.kind == "mfma":
            if p.D & (c.A | c.B):
                need = max(need, big)
            if p.D & c.C:
                if not (p.D == c.C and p.passes == c.passes):
                    need = max(need, {4: 6, 8: 10}[p.passes])
            elif p.D & c.D:
                need = max(need, {4: 6, 8: 10}[p.passes])
        elif c.kind in ("valu", "vmem", "ds"):
            if p.D & (c.r | c.w):
                need = max(need, big)
            if c.kind == "valu" and p.C & c.w:
                need = max(need, {4: 3, 8: 7}[p.passes])
    if p.kind == "salu" and ("s", "m0") in p.w and c.kind == "vmem" and getattr(c, "lds", False):
        need = max(need, 1)
    if p.kind == "vmem" and p.store and len(p.data) >= 3 and (p.data & c.w):
        need = max(need, 2)
    if p.kind == "ds" and not p.load and (p.r & c.w) and c.kind == "valu":
        need = max(need, 0)
    return need


def check_hazards(stream, name=""):
    errs = []
    n = len(stream)
    for i, c in enumerate(stream):
        if c.label or c.kind in ("nop", "wait"):
            continue
        dist = 0
        j = i - 1
        while j >= 0 and dist < 13:
            p = stream[j]
            if not p.label:
                need = required_gap(p, c)
                if need > dist:
                    errs.append(f"{name}: hazard need {need} have {dist}:\n    [{j}] {p.text}\n    [{i}] {c.text}")
                dist += p.states()
            j -= 1
    return errs


def check_counters(stream, name=""):
    errs = []
    vm = []
    lg = []
    for i, c in enumerate(stream):
        if c.label:
            continue
        if c.kind == "wait":
            if c.vm is not None:
                while len(vm) > c.vm:
                    vm.pop(0)
            if c.lgkm is not None:
                if any(k == "smem" for k, _ in lg) and c.lgkm != 0:
                    pass
                else:
                    while len(lg) > c.lgkm:
                        lg.pop(0)
            continue
        touched = c.r | c.w
        for d in vm:
            if d & touched:
                errs.append(f"{name}: [{i}] {c.text} touches pending vmem dest {sorted(d & touched)[:4]}")
        for k, d in lg:
            if d & touched:
                errs.append(f"{name}: [{i}] {c.text} touches pending lgkm dest {sorted(d & touched)[:4]}")
        if c.kind == "vmem":
            vm.append(set(c.w) if getattr(c, "load", False) else set())
            if len(vm) > 63:
                errs.append(f"{name}: [{i}] more than 63 vmem outstanding")
        elif c.kind == "ds":
            lg.append(("ds", set(c.w)))
        elif c.kind == "smem":
            lg.append(("smem", set(c.w)))
    return errs


def fix_hazards(stream):
    out = []
    for c in stream:
        if not (c.label or c.kind in ("nop", "wait")):
            dist = 0
            short = 0
            j = len(out) - 1
            while j >= 0 and dist < 13:
                p = out[j]
                if not p.label:
                    short = max(short, required_gap(p, c) - dist)
                    dist += p.states()
                j -= 1
            if short > 0:
                out.append(Ins(f"s_nop {short - 1}"))
        out.append(c)
    return out
```

```python
import math
import struct
import sys
from asmlib import Ins, check_hazards, check_counters, fix_hazards

NAME = "concat_heads__mha_block_cached__gqa_block_cached__near_ridge"
OPT = dict(nt_kv=True, w8=True, debug=False)


def f2u(x):
    return struct.unpack("<I", struct.pack("<f", x))[0]


def vr(b, n=4):
    return f"v[{b}:{b + n - 1}]" if n > 1 else f"v{b}"


def ar(b, n=4):
    return f"a[{b}:{b + n - 1}]" if n > 1 else f"a{b}"


def sr(b, n=4):
    return f"s[{b}:{b + n - 1}]" if n > 1 else f"s{b}"


MFMA = "v_mfma_f32_16x16x32_bf16"


class Gap:
    def __init__(self, mfma):
        self.mfma = mfma
        self.sc = []
        self.mem = []
        self.va = []

    def cost(self):
        t = 4 if self.mfma else 0
        for _ in self.sc:
            t += 4
        vec = self.mem + self.va
        if vec and self.mfma:
            t = max(t, 8)
        nds = 0
        for x in vec:
            t += 8 if getattr(x, "trans", False) else 4
            if x.kind == "ds":
                nds += 1
        if nds > 1:
            t += 4 * (nds - 1)
        return max(t, 16) if self.mfma else t

    def vec_free(self):
        used = 0
        for x in self.mem + self.va:
            used += 2 if getattr(x, "trans", False) else 1
        return 2 - used

    def flat(self):
        return ([self.mfma] if self.mfma else []) + self.sc + self.mem + self.va


def flat(gaps):
    out = []
    for g in gaps:
        out.extend(g.flat())
    return out


def place_dmas(gaps, dmas, allowed):
    n = len(dmas)
    if n == 0:
        return
    cand = [g for g in allowed if g >= 1]
    assert len(cand) >= n, (len(cand), n)
    picks = [cand[(i * len(cand)) // n] for i in range(n)]
    for (m0, so, d), g in zip(dmas, picks):
        assert gaps[g].vec_free() >= 1 and not any(x.kind == "vmem" for x in gaps[g].mem)
        gaps[g - 1].sc.append(m0)
        if so is not None:
            gaps[g].sc.insert(0, so)
        gaps[g].mem.append(d)


XBLK = 3104
XSZ = 8 * XBLK
WR = 1088
WG_ = 4 * WR + (8 if OPT["w8"] else 0)
WSZ = 17440
KVB = 1056
KVH = 8 * KVB
CELL = 2 * KVH
X_SLOT = [0, 59712, 136864]
W_SLOT = [24832, 42272, 84544, 101984, 119424]
LDS1 = 163840


def xslot(i):
    return X_SLOT[(i - 7) % 3]


def wslot(s):
    return W_SLOT[s % 5]


def kcell(t):
    return (2 * (t % 4)) * CELL


def vcell(t):
    return (2 * (t % 4) + 1) * CELL


S_X, S_W, S_K, S_V, S_O = 8, 12, 16, 20, 24
S_M0X, S_M0W, S_M0KV = 28, 29, 30
S_WCOL, S_WCOLN, S_KV, S_OOFF = 31, 32, 33, 34
S_T0, S_T1 = 35, 36
S_U = 37
S_C = 38
S_BAD = 40
S_BADU = 42
S_WV, S_HP, S_RH = 43, 44, 45
S_LO, S_RNG = 46, 47
S_TMP = 48
V_XD, V_WD, V_KVD, V_OST = 1, 2, 3, 4
V_XR, V_WR, V_KR, V_VR = 5, 8, 11, 14
V_OOB, V_DUM = 17, 18
V_T = 20
V_S = 32
V_P = 48
V_T2 = 56
V_ACC = 64
A_Q = 0
A_KB = [96, 128]
A_VB = [160, 192]
A_L = 224
A_ONE = 248


def ds_addr(vbase, full):
    return f"v{vbase + full // 65536}", full % 65536


def acc(rb, db):
    return V_ACC + 32 * rb + 4 * db


def rd_x(i, ks, par):
    out = []
    for rb in range(6):
        v, o = ds_addr(V_XR, xslot(i) + (rb & 1) * 128 + (rb >> 1) * 512 + ks * 64)
        out.append(Ins(f"ds_read_b128 {ar(A_VB[par] + 4 * rb)}, {v} offset:{o}", tag=("rd", "X", i)))
    return out


def rd_w(s, par):
    out = []
    for db in range(8):
        for half in range(2):
            v, o = ds_addr(V_WR, wslot(s) + half * 512 + (db >> 1) * 64 + (db & 1) * 8)
            out.append(Ins(f"ds_read_b64_tr_b16 {ar(A_KB[par] + 4 * db + 2 * half, 2)}, {v} offset:{o}", tag=("rd", "W", s)))
    return out


def rd_k(t):
    out = []
    par = t & 1
    for kb in range(2):
        for ks in range(4):
            v, o = ds_addr(V_KR, kcell(t) + kb * 512 + ks * 64)
            out.append(Ins(f"ds_read_b128 {ar(A_KB[par] + 16 * kb + 4 * ks)}, {v} offset:{o}", tag=("rd", "K", t)))
    return out


def rd_v(t):
    out = []
    par = t & 1
    for db in range(8):
        for hh in range(2):
            v, o = ds_addr(V_VR, vcell(t) + hh * 512 + db * 32)
            out.append(Ins(f"ds_read_b64_tr_b16 {ar(A_VB[par] + 4 * db + 2 * hh, 2)}, {v} offset:{o}", tag=("rd", "V", t)))
    return out


def dma_x(i, nxt=False):
    out = []
    for m in range(3):
        for jj in range(2):
            m0 = Ins(f"s_add_u32 m0, s{S_M0X}, {xslot(i) + jj * XBLK + m * 1024 - jj * 1280}")
            so = Ins(f"s_mov_b32 s{S_T0}, {64 * m * 1280 + i * 128}") if jj == 0 else None
            d = Ins(f"buffer_load_dwordx4 v{V_XD}, {sr(S_X)}, s{S_T0} offen offset:{jj * 1280} lds", tag=("dma", "X", i, nxt))
            out.append((m0, so, d))
    return out


def dma_w(s, nxt=False):
    out = []
    for r in range(4):
        m0 = Ins(f"s_add_u32 m0, s{S_M0W}, {wslot(s) + r * WR}")
        so = Ins(f"s_add_u32 s{S_T0}, s{S_WCOLN if nxt else S_WCOL}, {(32 * s + r) * 8192}")
        d = Ins(f"buffer_load_dwordx4 v{V_WD}, {sr(S_W)}, s{S_T0} offen lds", tag=("dma", "W", s, nxt))
        out.append((m0, so, d))
    return out


def dma_kv(kind, t):
    out = []
    cell = kcell(t) if kind == "K" else vcell(t)
    srd = S_K if kind == "K" else S_V
    nt = " nt" if OPT["nt_kv"] else ""
    for jj in range(4):
        m0 = Ins(f"s_add_u32 m0, s{S_M0KV}, {cell + jj * (KVB - 256)}")
        so = Ins(f"s_add_u32 s{S_T0}, s{S_KV}, {t * 8192}") if jj == 0 else None
        d = Ins(f"buffer_load_dwordx4 v{V_KVD}, {sr(srd)}, s{S_T0} offen offset:{jj * 256}{nt} lds", tag=("dma", kind, t, False))
        out.append((m0, so, d))
    return out


def sync_ins(needs):
    w = Ins("s_waitcnt vmcnt(0) lgkmcnt(0)", tag=("sync", tuple(needs)))
    return [w, Ins("s_barrier")]


def q_step(s):
    par = s & 1
    gaps = []
    for rb in range(6):
        for db in range(8):
            c = "0" if s == 0 else vr(acc(rb, db))
            gaps.append(Gap(Ins(f"{MFMA} {vr(acc(rb, db))}, {ar(A_KB[par] + 4 * db)}, {ar(A_VB[par] + 4 * rb)}, {c}")))
    if s < 19:
        reads = rd_w(s + 1, par ^ 1) + rd_x((s + 1) >> 1, (s + 1) & 1, par ^ 1)
        needs = [("W", s + 1, False), ("X", (s + 1) >> 1, False)]
    else:
        reads = rd_k(0) + rd_v(0)
        needs = [("K", 0, False), ("V", 0, False)]
    slots = [g for g in range(40) if g % 5 in (0, 2, 4)]
    for r, g in zip(reads, slots):
        gaps[g].mem.append(r)
    assert len(reads) <= len(slots)
    dm = []
    if s <= 14:
        dm += dma_w(s + 5)
    if 1 <= s <= 14:
        i = (s - 1) // 2 + 3
        x = dma_x(i)
        if (s - 1) % 2 == 0:
            dm += x[:3]
        else:
            m0, so, d = x[3]
            so = Ins(f"s_mov_b32 s{S_T0}, {64 * 1 * 1280 + i * 128}")
            dm += [(m0, so, d)] + x[4:]
    if s == 15:
        dm += dma_kv("K", 0) + dma_kv("V", 0)
    if s == 16:
        dm += dma_kv("K", 1)
    if s == 17:
        dm += dma_kv("V", 1) + dma_kv("K", 2)
    if s == 18:
        dm += dma_kv("V", 2) + dma_kv("K", 3)
    if s == 19:
        dm += dma_kv("V", 3)
    place_dmas(gaps, dm, [g for g in range(1, 47) if g % 5 in (1, 3)])
    return sync_ins(needs), gaps


def qk_mfmas(t, rb):
    par = t & 1
    sb = V_S + 8 * (rb & 1)
    out = []
    for kb in range(2):
        for ks in range(4):
            c = "0" if ks == 0 else vr(sb + 4 * kb)
            out.append(Ins(f"{MFMA} {vr(sb + 4 * kb)}, {ar(A_KB[par] + 16 * kb + 4 * ks)}, {ar(A_Q + 16 * rb + 4 * ks)}, {c}"))
    return out


def pv_mfmas(t, rb):
    par = t & 1
    p = V_P + 4 * (rb & 1)
    out = []
    for db in range(8):
        c = "0" if t == 0 else vr(acc(rb, db))
        out.append(Ins(f"{MFMA} {vr(acc(rb, db))}, {ar(A_VB[par] + 4 * db)}, {vr(p)}, {c}"))
    c = "0" if t == 0 else ar(A_L + 4 * rb)
    out.append(Ins(f"{MFMA} {ar(A_L + 4 * rb)}, {ar(A_ONE)}, {vr(p)}, {c}"))
    return out


def sm_exp(rb, i):
    r = V_S + 8 * (rb & 1) + i
    return Ins(f"v_exp_f32 v{r}, v{r}")


def sm_cvt(rb, i):
    r = V_S + 8 * (rb & 1) + 2 * i
    return Ins(f"v_cvt_pk_bf16_f32 v{V_P + 4 * (rb & 1) + i}, v{r}, v{r + 1}")


def a_step(t):
    gaps = []
    ds_slots = []
    free = []
    for j in range(6):
        base = len(gaps)
        first = (t == 0 and j == 0)
        for m in qk_mfmas(t, j):
            gaps.append(Gap(m))
        pt, prb = (t, j - 1) if j > 0 else (t - 1, 5)
        if not first:
            for m in pv_mfmas(pt, prb):
                gaps.append(Gap(m))
            gaps[base + 0].va.append(sm_exp(prb, 6))
            gaps[base + 1].va.append(sm_cvt(prb, 2))
            gaps[base + 2].va.append(sm_exp(prb, 7))
            gaps[base + 4].va.append(sm_cvt(prb, 3))
            gaps[base + 9].va.append(sm_exp(j, 0))
            gaps[base + 10].va.append(sm_exp(j, 1))
            gaps[base + 11].va.append(sm_cvt(j, 0))
            gaps[base + 12].va.append(sm_exp(j, 2))
            gaps[base + 13].va.append(sm_exp(j, 3))
            gaps[base + 14].va.append(sm_cvt(j, 1))
            gaps[base + 15].va.append(sm_exp(j, 4))
            gaps[base + 16].va.append(sm_exp(j, 5))
            if j < 5:
                ds_slots += [base + 1, base + 4, base + 6, base + 11, base + 14]
                free += [base + 3, base + 5, base + 7, base + 8]
            else:
                free += [base + 3, base + 5, base + 6, base + 7, base + 8]
        else:
            ds_slots += [base + 0, base + 2, base + 4, base + 5, base + 6]
            free += [base + 1, base + 3, base + 7]
            g = Gap(None)
            g.sc.append(Ins("s_nop 3"))
            for i in range(4):
                g.va.append(sm_exp(j, i))
            g.va += [sm_cvt(j, 0), sm_cvt(j, 1), sm_exp(j, 4), sm_exp(j, 5)]
            gaps.append(g)
    if t < 15:
        reads = rd_k(t + 1) + rd_v(t + 1)
        needs = [("K", t + 1, False), ("V", t + 1, False)]
    else:
        reads = rd_w(0, 0) + rd_x(0, 0, 0)
        needs = [("W", 0, True), ("X", 0, True)]
    assert len(reads) <= len(ds_slots)
    for r, g in zip(reads, ds_slots):
        gaps[g].mem.append(r)
    dm = []
    if t <= 11:
        dm = dma_kv("K", t + 4) + dma_kv("V", t + 4)
    elif t == 12:
        dm = dma_x(0, True)
    elif t == 13:
        dm = dma_w(0, True) + dma_w(1, True)
    elif t == 14:
        dm = dma_x(1, True) + dma_x(2, True)
    else:
        dm = dma_w(2, True) + dma_w(3, True) + dma_w(4, True)
    cand = []
    for g in free:
        if not cand or g - cand[-1] >= 4:
            cand.append(g)
    place_dmas(gaps, dm, cand)
    return sync_ins(needs), gaps


def a_drain():
    out = [sm_exp(5, 6), sm_exp(5, 7), sm_cvt(5, 2), sm_cvt(5, 3), Ins("s_nop 1")]
    out += pv_mfmas(15, 5)
    return out


def q_convert():
    out = [Ins("s_nop 7")]
    for rb in range(6):
        b = V_ACC + 32 * rb
        for i in range(16):
            out.append(Ins(f"v_mul_f32 v{b + 2 * i}, s{S_C}, v{b + 2 * i}"))
            out.append(Ins(f"v_mul_f32 v{b + 2 * i + 1}, s{S_C}, v{b + 2 * i + 1}"))
            out.append(Ins(f"v_cvt_pk_bf16_f32 v{b + 2 * i}, v{b + 2 * i}, v{b + 2 * i + 1}"))
            out.append(Ins(f"v_accvgpr_write_b32 a{A_Q + 16 * rb + i}, v{b + 2 * i}"))
    return out


def o_epilogue():
    out = []
    for rb in range(6):
        b = V_ACC + 32 * rb
        t = V_T2 + rb
        out.append(Ins(f"v_accvgpr_read_b32 v{t}, a{A_L + 4 * rb}"))
        out.append(Ins(f"v_subrev_u32 v{V_T}, s{S_LO}, v{t}"))
        out.append(Ins(f"v_rcp_f32 v{t}, v{t}"))
        out.append(Ins(f"v_cmp_le_u32 vcc, s{S_RNG}, v{V_T}"))
        out.append(Ins("s_nop 0"))
        out.append(Ins(f"s_or_b64 {sr(S_BAD, 2)}, {sr(S_BAD, 2)}, vcc"))
        for ks in range(4):
            for i in range(4 * ks, 4 * ks + 4):
                out.append(Ins(f"v_mul_f32 v{b + 2 * i}, v{t}, v{b + 2 * i}"))
                out.append(Ins(f"v_mul_f32 v{b + 2 * i + 1}, v{t}, v{b + 2 * i + 1}"))
                out.append(Ins(f"v_cvt_pk_bf16_f32 v{b + i}, v{b + 2 * i}, v{b + 2 * i + 1}"))
            out.append(Ins(f"s_add_u32 s{S_T0}, s{S_OOFF}, {ks * 192 * 1024 + (rb >> 2) * 4096}"))
            out.append(Ins(f"buffer_store_dwordx4 {vr(b + 4 * ks)}, v{V_OST}, {sr(S_O)}, s{S_T0} offen offset:{(rb & 3) * 1024}", tag=("store",)))
    return fix_hazards(out)


def k1_prologue():
    L = []
    a = lambda s, tag=None: L.append(Ins(s, tag))
    a("s_cmp_ge_u32 s2, 256")
    a("s_cbranch_scc1 K1_END")
    a("s_load_dwordx2 s[48:49], s[0:1], 0")
    a("s_load_dwordx2 s[50:51], s[0:1], 8")
    a("s_load_dwordx2 s[52:53], s[0:1], 16")
    a("s_load_dwordx2 s[54:55], s[0:1], 24")
    a("s_load_dwordx2 s[56:57], s[0:1], 40")
    a("s_load_dwordx2 s[58:59], s[0:1], 48")
    a("s_load_dwordx2 s[60:61], s[0:1], 56")
    a("s_load_dwordx2 s[62:63], s[0:1], 64")
    a("s_load_dwordx2 s[64:65], s[0:1], 96")
    a("v_lshrrev_b32 v20, 6, v0")
    a("v_and_b32 v0, 63, v0")
    a(f"v_readfirstlane_b32 s{S_WV}, v20")
    a("s_nop 0")
    a(f"s_lshr_b32 s{S_HP}, s{S_WV}, 1")
    a(f"s_and_b32 s{S_RH}, s{S_WV}, 1")
    a("s_and_b32 s66, s2, 7")
    a("s_lshr_b32 s67, s2, 3")
    a("s_lshr_b32 s68, s66, 2")
    a("s_and_b32 s69, s66, 3")
    a("s_lshl_b32 s69, s69, 2")
    a("s_lshr_b32 s70, s67, 3")
    a("s_add_u32 s69, s69, s70")
    a("s_and_b32 s70, s67, 7")
    a("v_lshrrev_b32 v20, 3, v0")
    a("v_and_b32 v21, 4, v20")
    a("v_and_b32 v22, 1, v20")
    a("v_lshl_add_u32 v21, v22, 1, v21")
    a("v_bfe_u32 v22, v20, 1, 1")
    a("v_add_u32 v21, v21, v22")
    a("v_lshlrev_b32 v21, 3, v21")
    a(f"s_lshl_b32 s71, s{S_WV}, 1")
    a("v_add_u32 v21, s71, v21")
    a("v_mul_u32_u24 v21, 1280, v21")
    a("v_and_b32 v22, 7, v0")
    a(f"v_lshl_add_u32 v{V_XD}, v22, 4, v21")
    a("v_lshrrev_b32 v20, 5, v0")
    a("v_lshlrev_b32 v20, 15, v20")
    a(f"s_lshl_b32 s71, s{S_WV}, 16")
    a("v_add_u32 v20, s71, v20")
    a("v_and_b32 v21, 31, v0")
    a(f"v_lshl_add_u32 v{V_WD}, v21, 4, v20")
    a("v_lshrrev_b32 v23, 4, v0")
    a("v_lshlrev_b32 v20, 11, v23")
    a(f"s_lshl_b32 s71, s{S_RH}, 10")
    a("v_add_u32 v20, s71, v20")
    a("v_and_b32 v21, 15, v0")
    a(f"v_lshl_add_u32 v{V_KVD}, v21, 4, v20")
    a(f"v_lshlrev_b32 v{V_OST}, 4, v0")
    a("v_and_b32 v24, 7, v0")
    a("v_bfe_u32 v25, v0, 3, 1")
    a("v_lshlrev_b32 v26, 4, v23")
    a("v_lshl_add_u32 v26, v25, 8, v26")
    a(f"v_mul_u32_u24 v20, {XBLK}, v24")
    a("v_add_u32 v20, v20, v26")
    a(f"s_mul_i32 s71, s{S_RH}, 1536")
    a(f"v_add_u32 v{V_XR}, s71, v20")
    a(f"v_mul_u32_u24 v20, {KVB}, v24")
    a("v_add_u32 v20, v20, v26")
    a(f"s_mul_i32 s72, s{S_HP}, {KVH}")
    a(f"v_add_u32 v{V_KR}, s72, v20")
    a("v_bfe_u32 v24, v0, 2, 2")
    a("v_and_b32 v25, 3, v0")
    a(f"v_mul_u32_u24 v20, {WG_}, v23")
    a(f"v_mul_u32_u24 v21, {WR}, v24")
    a("v_add_u32 v20, v20, v21")
    a("v_lshl_add_u32 v20, v25, 4, v20")
    a(f"s_lshl_b32 s71, s{S_HP}, 8")
    a(f"v_add_u32 v{V_WR}, s71, v20")
    a("v_and_b32 v20, 1, v23")
    a("v_lshl_add_u32 v20, v20, 2, v24")
    a(f"v_mul_u32_u24 v20, {KVB}, v20")
    a("v_lshrrev_b32 v21, 1, v23")
    a("v_lshl_add_u32 v20, v21, 8, v20")
    a("v_lshl_add_u32 v20, v25, 3, v20")
    a(f"v_add_u32 v{V_VR}, s72, v20")
    for b in (V_XR, V_WR, V_KR, V_VR):
        a(f"v_add_u32 v{b + 1}, 0x10000, v{b}")
        a(f"v_add_u32 v{b + 2}, 0x20000, v{b}")
    a(f"v_mov_b32 v{V_OOB}, 0x7ffffff0")
    a("v_mov_b32 v20, 0x3f803f80")
    for i in range(4):
        a(f"v_accvgpr_write_b32 a{A_ONE + i}, v20")
    a(f"s_mul_i32 s{S_M0X}, s{S_WV}, {2 * XBLK}")
    a(f"s_mul_i32 s{S_M0W}, s{S_WV}, {WG_}")
    a(f"s_mul_i32 s71, s{S_RH}, {4 * KVB}")
    a(f"s_add_u32 s{S_M0KV}, s72, s71")
    a(f"s_mov_b32 s{S_C}, {hex(f2u(math.log2(math.e) / math.sqrt(128.0)))}")
    a(f"s_mov_b32 s{S_C + 1}, s{S_C}")
    lo, hi = f2u(2.0 ** -20), f2u(2.0 ** 40)
    a(f"s_mov_b32 s{S_LO}, {hex(lo)}")
    a(f"s_mov_b32 s{S_RNG}, {hex(hi - lo)}")
    a(f"s_mov_b32 s{S_BADU}, 0")
    a(f"s_mov_b32 s{S_U}, 0")
    a(f"s_mov_b32 s{S_WCOLN}, 0")
    a("s_waitcnt lgkmcnt(0)")
    a("s_cmp_eq_u32 s68, 0")
    a("s_cselect_b64 s[48:49], s[48:49], s[56:57]")
    a("s_cselect_b64 s[50:51], s[50:51], s[58:59]")
    a("s_cselect_b64 s[52:53], s[52:53], s[60:61]")
    a("s_cselect_b64 s[54:55], s[54:55], s[62:63]")
    a("s_mul_i32 s71, s69, 245760")
    a(f"s_add_u32 s{S_X}, s48, s71")
    a(f"s_addc_u32 s{S_X + 1}, s49, 0")
    a(f"s_mov_b32 s{S_X + 2}, 245760")
    a(f"s_mov_b32 s{S_X + 3}, 0x20000")
    a("s_lshl_b32 s71, s70, 10")
    a(f"s_add_u32 s{S_W}, s54, s71")
    a(f"s_addc_u32 s{S_W + 1}, s55, 0")
    a(f"s_sub_u32 s{S_W + 2}, {640 * 8192}, s71")
    a(f"s_mov_b32 s{S_W + 3}, 0x20000")
    a("s_lshl_b32 s71, s69, 5")
    a("s_lshl_b32 s72, s70, 2")
    a("s_add_u32 s71, s71, s72")
    a(f"s_add_u32 s71, s71, s{S_HP}")
    a("s_lshl_b32 s71, s71, 17")
    a(f"s_add_u32 s{S_K}, s50, s71")
    a(f"s_addc_u32 s{S_K + 1}, s51, 0")
    a(f"s_mov_b32 s{S_K + 2}, {3 * 131072}")
    a(f"s_mov_b32 s{S_K + 3}, 0x20000")
    a(f"s_add_u32 s{S_V}, s52, s71")
    a(f"s_addc_u32 s{S_V + 1}, s53, 0")
    a(f"s_mov_b32 s{S_V + 2}, {3 * 131072}")
    a(f"s_mov_b32 s{S_V + 3}, 0x20000")
    a("s_lshl_b32 s71, s68, 7")
    a(f"s_add_u32 s72, s72, s{S_HP}")
    a("s_lshl_b32 s72, s72, 2")
    a("s_add_u32 s71, s71, s72")
    a("s_mul_i32 s71, s71, 192")
    a("s_mul_i32 s72, s69, 12")
    a("s_add_u32 s71, s71, s72")
    a(f"s_mul_i32 s72, s{S_RH}, 6")
    a("s_add_u32 s71, s71, s72")
    a("s_lshl_b32 s71, s71, 10")
    a(f"s_add_u32 s{S_O}, s64, s71")
    a(f"s_addc_u32 s{S_O + 1}, s65, 0")
    a(f"s_mov_b32 s{S_O + 2}, {(11 * 192 + 6) * 1024}")
    a(f"s_mov_b32 s{S_O + 3}, 0x20000")
    dm = dma_x(0, True) + dma_w(0, True) + dma_w(1, True) + dma_x(1, True) + dma_x(2, True) + dma_w(2, True) + dma_w(3, True) + dma_w(4, True)
    for m0, so, d in dm:
        L.append(m0)
        L.append(so if so is not None else Ins("s_nop 0"))
        L.append(d)
    L.extend(sync_ins([("W", 0, True), ("X", 0, True)]))
    L.extend(rd_w(0, 0) + rd_x(0, 0, 0))
    for i in range(24):
        a(f"buffer_load_dword v{V_DUM}, v{V_OOB}, {sr(S_X)}, 0 offen", ("dummy",))
    return fix_hazards(L)


def k1_body():
    L = []
    est = 0
    L.append(Ins("K1_UNIT:"))
    L.append(Ins(f"s_mov_b32 s{S_WCOL}, s{S_WCOLN}"))
    L.append(Ins(f"s_add_u32 s{S_WCOLN}, s{S_WCOL}, 512"))
    L.append(Ins(f"s_lshl_b32 s{S_KV}, s{S_U}, 18"))
    L.append(Ins(f"s_mul_i32 s{S_OOFF}, s{S_U}, {8 * 192 * 1024}"))
    L.append(Ins(f"s_mov_b64 {sr(S_BAD, 2)}, 0"))
    for s in range(20):
        sy, gaps = q_step(s)
        L += sy + flat(gaps)
        est += sum(g.cost() for g in gaps)
    qc = q_convert()
    L += qc
    est += 4 * len(qc)
    L.append(Ins(f"s_cmp_eq_u32 s{S_U}, 1"))
    L.append(Ins(f"s_cselect_b32 s{S_X + 2}, 0, s{S_X + 2}"))
    L.append(Ins(f"s_cselect_b32 s{S_W + 2}, 0, s{S_W + 2}"))
    for t in range(16):
        sy, gaps = a_step(t)
        L += sy + flat(gaps)
        est += sum(g.cost() for g in gaps)
    L += a_drain()
    L.append(Ins("s_nop 7"))
    ep = o_epilogue()
    L += ep
    est += 4 * len(ep) + 200
    L.append(Ins(f"s_cmp_lg_u64 {sr(S_BAD, 2)}, 0"))
    L.append(Ins(f"s_cselect_b32 s{S_T0}, 1, 0"))
    L.append(Ins(f"s_lshl_b32 s{S_T0}, s{S_T0}, s{S_U}"))
    L.append(Ins(f"s_or_b32 s{S_BADU}, s{S_BADU}, s{S_T0}"))
    L.append(Ins(f"s_add_u32 s{S_U}, s{S_U}, 1"))
    L.append(Ins(f"s_cmp_lt_u32 s{S_U}, 2"))
    L.append(Ins("s_cbranch_scc1 K1_UNIT"))
    print(f"k1 body: {len(L)} instructions, estimated {est} cycles per unit", file=sys.stderr)
    return L


def resolve_waits(segments):
    seq = []
    for pi, seg in enumerate(segments):
        for x in seg:
            seq.append((pi, x))
    best = {}
    issued = []
    for pi, x in seq:
        if x.label:
            continue
        if x.kind == "vmem":
            if x.tag and x.tag[0] == "dma":
                issued.append((pi + (1 if x.tag[3] else 0), x.tag[1], x.tag[2]))
            else:
                issued.append(None)
        if x.tag and x.tag[0] == "sync":
            last = -1
            for kind, idx, nxt in x.tag[1]:
                key = (pi + (1 if nxt else 0), kind, idx)
                pos = [i for i, k in enumerate(issued) if k == key]
                assert pos, ("missing dma", key)
                last = max(last, pos[-1])
            n = min(len(issued) - 1 - last, 63)
            best[id(x)] = min(best.get(id(x), 99), n)
    for pi, x in seq:
        if not x.label and x.tag and x.tag[0] == "sync":
            x.text = f"s_waitcnt vmcnt({best[id(x)]}) lgkmcnt(0)"
            x.vm = best[id(x)]


def check_lds_k1(segments):
    def region(kind, idx):
        if kind == "X":
            return xslot(idx), xslot(idx) + XSZ
        if kind == "W":
            return wslot(idx), wslot(idx) + WSZ
        if kind == "K":
            return kcell(idx), kcell(idx) + CELL
        return vcell(idx), vcell(idx) + CELL
    total_reads = {"X": 12, "W": 16, "K": 8, "V": 16}
    live = {}
    for pi, seg in enumerate(segments):
        for x in seg:
            if x.label:
                continue
            if x.mn == "s_barrier":
                for k, v in live.items():
                    v[3] = v[2]
            if x.tag and x.tag[0] == "sync":
                for kind, idx, nxt in x.tag[1]:
                    live[(pi + (1 if nxt else 0), kind, idx)][4] = True
            if x.tag and x.tag[0] == "dma":
                key = (pi + (1 if x.tag[3] else 0), x.tag[1], x.tag[2])
                lo, hi = region(x.tag[1], x.tag[2])
                assert hi <= LDS1
                if key not in live:
                    for k, v in list(live.items()):
                        if v[0] < hi and lo < v[1]:
                            assert v[3] == total_reads[k[1]], ("LDS overwrite", key, k, v)
                            del live[k]
                    live[key] = [lo, hi, 0, 0, False]
            if x.tag and x.tag[0] == "rd":
                cands = [k for k in live if k[1] == x.tag[1] and k[2] == x.tag[2]]
                assert len(cands) == 1, (x.tag, cands)
                assert live[cands[0]][4], ("read before visible", x.tag)
                live[cands[0]][2] += 1


def gen_k1():
    pro = k1_prologue()
    body = k1_body()
    resolve_waits([pro, body, body])
    check_lds_k1([pro, body, body])
    errs = check_hazards(pro + body + body, "k1") + check_counters(pro + body + body, "k1")
    errs = [e for e in errs if f"('v', {V_DUM})" not in e]
    for e in errs[:20]:
        print(e, file=sys.stderr)
    assert not errs, f"{len(errs)} problems"
    tail = [Ins("s_waitcnt vmcnt(0) lgkmcnt(0)"), Ins("K1_END:"), Ins("s_endpgm")]
    return pro + body + tail


K2_BASE = 1024
K2_D = 8
LDS2 = K2_BASE + K2_D * CELL
T_O, T_W, T_OUT = 8, 12, 16
T_M0, T_SO, T_SW, T_CNT, T_T0, T_T1 = 20, 21, 22, 23, 24, 25
T_WV, T_MH, T_KH = 26, 27, 28
U_OA, U_OB, U_WD, U_RD = 1, 2, 3, 4
U_X, U_ST = 8, 9
U_T = 12
U_ACC = 64
U_RX = 192
B_O = 0
B_W = [128, 160]


def k2_rd(s):
    out = []
    par = s & 1
    for nb in range(8):
        for hh in range(2):
            v, o = ds_addr(U_RD, K2_BASE + (s % K2_D) * CELL + hh * 512 + nb * 32)
            out.append(Ins(f"ds_read_b64_tr_b16 {ar(B_W[par] + 4 * nb + 2 * hh, 2)}, {v} offset:{o}", tag=("rd", "W", s)))
    return out


def k2_dma(s, rel, ep):
    out = []
    for jj in range(4):
        m0 = Ins(f"s_add_u32 m0, s{T_M0}, {K2_BASE + (s % K2_D) * CELL + jj * (KVB - 1280)}")
        so = Ins(f"s_add_u32 s{T_T0}, s{T_SW}, {rel * 40960}") if jj == 0 else None
        d = Ins(f"buffer_load_dwordx4 v{U_WD}, {sr(T_W)}, s{T_T0} offen offset:{jj * 1280} lds", tag=("dma", "W", s % K2_D, ep))
        out.append((m0, so, d))
    return out


def k2_oload(s, rel, ep):
    out = []
    for i in range(4):
        so = Ins(f"s_add_u32 s{T_T1}, s{T_SO}, {rel * 192 * 1024}") if i == 0 else None
        d = Ins(f"buffer_load_dwordx4 {ar(B_O + 16 * (s % 8) + 4 * i)}, v{U_OA if i < 2 else U_OB}, {sr(T_O)}, s{T_T1} offen offset:{(i & 1) * 1024}",
                tag=("dma", "O", s % 8, ep))
        out.append((so, d))
    return out


def k2_step(s):
    par = s & 1
    gaps = []
    for i in range(4):
        for nb in range(8):
            d = vr(U_ACC + 32 * i + 4 * nb)
            gaps.append(Gap(Ins(f"{MFMA} {d}, {ar(B_W[par] + 4 * nb)}, {ar(B_O + 16 * (s % 8) + 4 * i)}, {d}")))
    reads = k2_rd(s + 1)
    slots = [0, 1, 2, 4, 5, 6, 8, 9, 10, 12, 13, 14, 16, 17, 18, 20]
    for r, g in zip(reads, slots):
        gaps[g].mem.append(r)
    place_dmas(gaps, k2_dma(s + 8, s + 8, True), [3, 11, 19, 27])
    for (so, d), g in zip(k2_oload(s + 7, s + 7, s + 7 >= 8), [7, 15, 23, 30]):
        if so is not None:
            gaps[g].sc.insert(0, so)
        gaps[g].mem.append(d)
    needs = [("W", (s + 1) % K2_D, s + 1 >= 8), ("O", s % 8, False)]
    return sync_ins(needs), gaps


def gen_k2():
    L = []
    a = lambda s, tag=None: L.append(Ins(s, tag))
    a("s_cmp_ge_u32 s2, 240")
    a("s_cbranch_scc1 K2_END")
    a("s_load_dwordx2 s[48:49], s[0:1], 32")
    a("s_load_dwordx2 s[50:51], s[0:1], 72")
    a("s_load_dwordx2 s[52:53], s[0:1], 80")
    a("s_load_dwordx2 s[54:55], s[0:1], 96")
    a("v_lshrrev_b32 v20, 6, v0")
    a("v_and_b32 v0, 63, v0")
    a(f"v_readfirstlane_b32 s{T_WV}, v20")
    a("s_nop 0")
    a(f"s_lshr_b32 s{T_KH}, s{T_WV}, 1")
    a(f"s_and_b32 s{T_MH}, s{T_WV}, 1")
    a("s_and_b32 s56, s2, 7")
    a("s_lshr_b32 s57, s2, 3")
    a("s_lshr_b32 s58, s56, 2")
    a("s_mul_i32 s59, s57, 52")
    a("s_lshr_b32 s59, s59, 8")
    a("s_mul_i32 s60, s59, 5")
    a("s_sub_u32 s60, s57, s60")
    a("s_and_b32 s61, s56, 3")
    a("s_mul_i32 s61, s61, 6")
    a("s_add_u32 s59, s59, s61")
    a("v_lshlrev_b32 v20, 4, v0")
    a(f"s_lshl_b32 s61, s{T_KH}, 11")
    a(f"v_add_u32 v{U_OA}, s61, v20")
    a(f"v_xor_b32 v{U_OB}, 2048, v{U_OA}")
    a("v_lshrrev_b32 v23, 4, v0")
    a(f"v_mul_u32_u24 v21, {8 * 1280}, v23")
    a(f"s_mul_i32 s61, s{T_MH}, {4 * 1280}")
    a("v_add_u32 v21, s61, v21")
    a("v_and_b32 v22, 15, v0")
    a(f"v_lshl_add_u32 v{U_WD}, v22, 4, v21")
    a("v_bfe_u32 v24, v0, 2, 2")
    a("v_and_b32 v25, 3, v0")
    a("v_and_b32 v21, 1, v23")
    a("v_lshl_add_u32 v21, v21, 2, v24")
    a(f"v_mul_u32_u24 v21, {KVB}, v21")
    a("v_lshrrev_b32 v26, 1, v23")
    a("v_lshl_add_u32 v21, v26, 8, v21")
    a("v_lshl_add_u32 v21, v25, 3, v21")
    a(f"s_mul_i32 s62, s{T_KH}, {KVH}")
    a(f"v_add_u32 v{U_RD}, s62, v21")
    a(f"v_add_u32 v{U_RD + 1}, 0x10000, v{U_RD}")
    a(f"v_add_u32 v{U_RD + 2}, 0x20000, v{U_RD}")
    a(f"s_mul_i32 s61, s{T_MH}, {4 * KVB}")
    a(f"s_add_u32 s{T_M0}, s62, s61")
    a(f"s_lshl_b32 s61, s{T_WV}, 14")
    a(f"v_add_u32 v{U_X}, s61, v20")
    a("v_mul_u32_u24 v21, 2560, v22")
    a(f"v_lshl_add_u32 v{U_ST}, v23, 3, v21")
    a("s_waitcnt lgkmcnt(0)")
    a("s_cmp_eq_u32 s58, 0")
    a("s_cselect_b64 s[48:49], s[48:49], s[50:51]")
    a("s_lshl_b32 s61, s58, 7")
    a(f"s_lshl_b32 s62, s{T_KH}, 6")
    a("s_add_u32 s61, s61, s62")
    a("s_mul_i32 s61, s61, 192")
    a("s_lshl_b32 s62, s59, 3")
    a("s_add_u32 s61, s61, s62")
    a(f"s_lshl_b32 s62, s{T_MH}, 2")
    a("s_add_u32 s61, s61, s62")
    a("s_lshl_b32 s61, s61, 10")
    a(f"s_add_u32 s{T_O}, s54, s61")
    a(f"s_addc_u32 s{T_O + 1}, s55, 0")
    a(f"s_mov_b32 s{T_O + 2}, {(63 * 192 + 4) * 1024}")
    a(f"s_mov_b32 s{T_O + 3}, 0x20000")
    a(f"s_mul_i32 s61, s{T_KH}, {2048 * 1280}")
    a("s_lshl_b32 s62, s60, 8")
    a("s_add_u32 s61, s61, s62")
    a(f"s_add_u32 s{T_W}, s48, s61")
    a(f"s_addc_u32 s{T_W + 1}, s49, 0")
    a(f"s_mov_b32 s{T_W + 2}, {2047 * 1280 + 256}")
    a(f"s_mov_b32 s{T_W + 3}, 0x20000")
    a("s_lshl_b32 s61, s59, 7")
    a(f"s_lshl_b32 s63, s{T_MH}, 6")
    a("s_add_u32 s61, s61, s63")
    a(f"s_lshl_b32 s63, s{T_KH}, 5")
    a("s_add_u32 s61, s61, s63")
    a("s_mul_i32 s61, s61, 2560")
    a("s_mul_i32 s63, s58, 1280")
    a("s_add_u32 s61, s61, s63")
    a("s_add_u32 s61, s61, s62")
    a(f"s_add_u32 s{T_OUT}, s52, s61")
    a(f"s_addc_u32 s{T_OUT + 1}, s53, 0")
    a(f"s_mov_b32 s{T_OUT + 2}, {31 * 2560 + 256}")
    a(f"s_mov_b32 s{T_OUT + 3}, 0x20000")
    a(f"s_mov_b32 s{T_SO}, 0")
    a(f"s_mov_b32 s{T_SW}, 0")
    for s in range(-8, 0):
        dm = k2_dma(s + 8, s + 8, True)
        ol = k2_oload(s + 7, s + 7, True) if s + 7 >= 0 else [None] * 4
        for (m0, so, d), o in zip(dm, ol):
            L.append(m0)
            L.append(so if so is not None else Ins("s_nop 0"))
            L.append(d)
            if o is not None:
                if o[0] is not None:
                    L.append(o[0])
                L.append(o[1])
    for i in range(128):
        a(f"v_mov_b32 v{U_ACC + i}, 0")
    L.extend(sync_ins([("W", 0, True)]))
    L.extend(k2_rd(0))
    a(f"s_mov_b32 s{T_CNT}, 0")
    pro = fix_hazards(L)

    body = [Ins("K2_LOOP:")]
    est = 0
    for s in range(8):
        sy, gaps = k2_step(s)
        if s == 7:
            gaps[28].sc.append(Ins(f"s_add_u32 s{T_CNT}, s{T_CNT}, 1"))
            gaps[31].sc.append(Ins(f"s_add_u32 s{T_SO}, s{T_SO}, {8 * 192 * 1024}"))
            gaps[31].sc.append(Ins(f"s_add_u32 s{T_SW}, s{T_SW}, {8 * 40960}"))
            gaps[31].sc.append(Ins(f"s_cmp_lt_u32 s{T_CNT}, 8"))
        body += sy + flat(gaps)
        est += sum(g.cost() for g in gaps)
    body.append(Ins("s_cbranch_scc1 K2_LOOP"))
    print(f"k2 body: {len(body)} instructions, estimated {est} cycles per 8 steps", file=sys.stderr)

    E = []
    a = lambda s, tag=None: E.append(Ins(s, tag))
    a("s_waitcnt vmcnt(0) lgkmcnt(0)")
    a("s_barrier")
    a("s_nop 7")
    for i in range(16):
        a(f"ds_write_b128 v{U_X}, {vr(U_ACC + 64 + 4 * i)} offset:{i * 1024}")
    a(f"v_xor_b32 v{U_X}, 0x8000, v{U_X}")
    a("s_waitcnt lgkmcnt(0)")
    a("s_barrier")
    for i in range(16):
        a(f"ds_read_b128 {vr(U_RX + 4 * i)}, v{U_X} offset:{i * 1024}")
        if i == 7:
            a("s_waitcnt lgkmcnt(4)")
    for i in range(2):
        for nb in range(8):
            k = 8 * i + nb
            a(f"s_waitcnt lgkmcnt({min(15 - k, 12)})")
            b = U_ACC + 32 * i + 4 * nb
            for r in range(4):
                a(f"v_add_f32 v{b + r}, v{b + r}, v{U_RX + 4 * k + r}")
            a(f"v_cvt_pk_bf16_f32 v{b}, v{b}, v{b + 1}")
            a(f"v_cvt_pk_bf16_f32 v{b + 1}, v{b + 2}, v{b + 3}")
            if nb == 0:
                a(f"s_mov_b32 s{T_T0}, {i * 16 * 2560}")
            a(f"buffer_store_dwordx2 {vr(b, 2)}, v{U_ST}, {sr(T_OUT)}, s{T_T0} offen offset:{nb * 32}")
    a("s_waitcnt vmcnt(0)")
    epi = fix_hazards(E)
    resolve_waits([pro, body, body, body])
    full = pro + body + body + epi
    errs = check_hazards(full, "k2") + check_counters(full, "k2")
    for e in errs[:20]:
        print(e, file=sys.stderr)
    assert not errs, f"{len(errs)} problems"
    return pro + body + epi + [Ins("K2_END:"), Ins("s_endpgm")]


def kernel_text(label, ins):
    out = [f".globl {label}", ".p2align 8", f".type {label},@function", f"{label}:"]
    for x in ins:
        out.append(x.text if x.label else "    " + x.text)
    return "\n".join(out)


def descriptor(label):
    return f""".p2align 6
.amdhsa_kernel {label}
  .amdhsa_next_free_vgpr 512
  .amdhsa_next_free_sgpr 102
  .amdhsa_accum_offset 256
  .amdhsa_group_segment_fixed_size 0
  .amdhsa_kernarg_size 104
  .amdhsa_user_sgpr_count 2
  .amdhsa_user_sgpr_kernarg_segment_ptr 1
  .amdhsa_system_sgpr_workgroup_id_x 1
.end_amdhsa_kernel"""


def main(path):
    ref = open(f"cdna_kernels/{NAME}.s.ref").read().splitlines()
    head = [l for l in ref if l.startswith(";") and "@launch" not in l and "Override launch" not in l and "grid=ceil" not in l]
    k1 = gen_k1()
    k2 = gen_k2()
    out = head + [
        f"; @launch kernel=attn_kernel grid=(256,1,1) block=(256,1,1) lds={LDS1}",
        f"; @launch kernel=oproj_kernel grid=(240,1,1) block=(256,1,1) lds={LDS2}",
        '.amdgcn_target "amdgcn-amd-amdhsa--gfx950"', ".text",
        kernel_text("attn_kernel", k1), kernel_text("oproj_kernel", k2),
        '.section .rodata,"a"', descriptor("attn_kernel"), descriptor("oproj_kernel"), ""]
    open(path, "w").write("\n".join(out))


if __name__ == "__main__":
    main(sys.argv[1] if len(sys.argv) > 1 else f"cdna_kernels/{NAME}.s")
```

```python
import math
import struct
import sys
from asmlib import Ins, check_hazards, check_counters, fix_hazards

NAME = "concat_heads__mha_block_cached__gqa_block_cached__near_ridge"
OPT = dict(nt_kv=True, w8=True, stamps=False, kvrot=0, fx="", fw="", fst="", fo2="", fwo="", fout="", wotouch=0, map84=0, nomfma=0, nods=0, novalu=0)
for _a in sys.argv[2:]:
    _k, _v = _a.split("=")
    OPT[_k] = int(_v) if _v.lstrip("-").isdigit() else _v


def f2u(x):
    return struct.unpack("<I", struct.pack("<f", x))[0]


def vr(b, n=4):
    return f"v[{b}:{b + n - 1}]" if n > 1 else f"v{b}"


def ar(b, n=4):
    return f"a[{b}:{b + n - 1}]" if n > 1 else f"a{b}"


def sr(b, n=4):
    return f"s[{b}:{b + n - 1}]" if n > 1 else f"s{b}"


MFMA = "v_mfma_f32_16x16x32_bf16"


class Gap:
    def __init__(self, mfma):
        self.mfma = mfma
        self.sc = []
        self.mem = []
        self.va = []

    def cost(self):
        t = 4 if self.mfma else 0
        for _ in self.sc:
            t += 4
        vec = self.mem + self.va
        if vec and self.mfma:
            t = max(t, 8)
        nds = 0
        for x in vec:
            t += 8 if getattr(x, "trans", False) else 4
            if x.kind == "ds":
                nds += 1
        if nds > 1:
            t += 4 * (nds - 1)
        return max(t, 16) if self.mfma else t

    def vec_free(self):
        used = 0
        for x in self.mem + self.va:
            used += 2 if getattr(x, "trans", False) else 1
        return 2 - used

    def flat(self):
        return ([self.mfma] if self.mfma else []) + self.sc + self.mem + self.va


def flat(gaps):
    out = []
    for g in gaps:
        out.extend(g.flat())
    return out


def place_dmas(gaps, dmas, allowed):
    n = len(dmas)
    if n == 0:
        return
    cand = [g for g in allowed if g >= 1]
    assert len(cand) >= n, (len(cand), n)
    picks = [cand[(i * len(cand)) // n] for i in range(n)]
    for (m0, so, d), g in zip(dmas, picks):
        assert gaps[g].vec_free() >= 1 and not any(x.kind == "vmem" for x in gaps[g].mem)
        gaps[g - 1].sc.append(m0)
        if so is not None:
            gaps[g].sc.insert(0, so)
        gaps[g].mem.append(d)


XBLK = 3104
XSZ = 8 * XBLK
WR = 1088
WG_ = 4 * WR + (8 if OPT["w8"] else 0)
WSZ = 17440
KVB = 1056
KVH = 8 * KVB
CELL = 2 * KVH
X_SLOT = [0, 59712, 136864]
W_SLOT = [24832, 42272, 84544, 101984, 119424]
LDS1 = 163840


def xslot(i):
    return X_SLOT[(i - 7) % 3]


def wslot(s):
    return W_SLOT[s % 5]


def kcell(t):
    return (2 * (t % 4)) * CELL


def vcell(t):
    return (2 * (t % 4) + 1) * CELL


S_X, S_W, S_K, S_V, S_O = 8, 12, 16, 20, 24
S_M0X, S_M0W, S_M0KV = 28, 29, 30
S_WCOL, S_WCOLN, S_KV, S_OOFF = 31, 32, 33, 34
S_T0, S_T1 = 35, 36
S_U = 37
S_C = 38
S_BAD = 40
S_BADU = 42
S_WV, S_HP, S_RH = 43, 44, 45
S_LO, S_RNG = 46, 47
S_ROT = 7
S_TMP = 48
V_XD, V_WD, V_KVD, V_OST = 1, 2, 3, 4
V_XR, V_WR, V_KR, V_VR = 5, 8, 11, 14
V_OOB, V_DUM = 17, 18
V_T = 20
V_S = 32
V_P = 48
V_T2 = 56
V_ACC = 64
A_Q = 0
A_KB = [96, 128]
A_VB = [160, 192]
A_L = 224
A_ONE = 248


def ds_addr(vbase, full):
    return f"v{vbase + full // 65536}", full % 65536


def acc(rb, db):
    return V_ACC + 32 * rb + 4 * db


def rd_x(i, ks, par):
    out = []
    for rb in range(6):
        v, o = ds_addr(V_XR, xslot(i) + (rb & 1) * 128 + (rb >> 1) * 512 + ks * 64)
        out.append(Ins(f"ds_read_b128 {ar(A_VB[par] + 4 * rb)}, {v} offset:{o}", tag=("rd", "X", i)))
    return out


def rd_w(s, par):
    out = []
    for db in range(8):
        for half in range(2):
            v, o = ds_addr(V_WR, wslot(s) + half * 512 + (db >> 1) * 64 + (db & 1) * 8)
            out.append(Ins(f"ds_read_b64_tr_b16 {ar(A_KB[par] + 4 * db + 2 * half, 2)}, {v} offset:{o}", tag=("rd", "W", s)))
    return out


def rd_k(t):
    out = []
    par = t & 1
    for kb in range(2):
        for ks in range(4):
            v, o = ds_addr(V_KR, kcell(t) + kb * 512 + ks * 64)
            out.append(Ins(f"ds_read_b128 {ar(A_KB[par] + 16 * kb + 4 * ks)}, {v} offset:{o}", tag=("rd", "K", t)))
    return out


def rd_v(t):
    out = []
    par = t & 1
    for db in range(8):
        for hh in range(2):
            v, o = ds_addr(V_VR, vcell(t) + hh * 512 + db * 32)
            out.append(Ins(f"ds_read_b64_tr_b16 {ar(A_VB[par] + 4 * db + 2 * hh, 2)}, {v} offset:{o}", tag=("rd", "V", t)))
    return out


def dma_x(i, nxt=False):
    out = []
    for m in range(3):
        for jj in range(2):
            m0 = Ins(f"s_add_u32 m0, s{S_M0X}, {xslot(i) + jj * XBLK + m * 1024 - jj * 1280}")
            so = Ins(f"s_mov_b32 s{S_T0}, {64 * m * 1280 + i * 128}") if jj == 0 else None
            d = Ins(f"buffer_load_dwordx4 v{V_XD}, {sr(S_X)}, s{S_T0} offen offset:{jj * 1280} {OPT['fx']} lds", tag=("dma", "X", i, nxt))
            out.append((m0, so, d))
    return out


def dma_w(s, nxt=False):
    out = []
    for r in range(4):
        m0 = Ins(f"s_add_u32 m0, s{S_M0W}, {wslot(s) + r * WR}")
        so = Ins(f"s_add_u32 s{S_T0}, s{S_WCOLN if nxt else S_WCOL}, {(32 * s + r) * 8192}")
        d = Ins(f"buffer_load_dwordx4 v{V_WD}, {sr(S_W)}, s{S_T0} offen {OPT['fw']} lds", tag=("dma", "W", s, nxt))
        out.append((m0, so, d))
    return out


def dma_kv(kind, t):
    out = []
    cell = kcell(t) if kind == "K" else vcell(t)
    srd = S_K if kind == "K" else S_V
    nt = " nt" if OPT["nt_kv"] else ""
    for jj in range(4):
        m0 = Ins(f"s_add_u32 m0, s{S_M0KV}, {cell + jj * (KVB - 256)}")
        so = Ins(f"s_xor_b32 s{S_T0}, s{S_KV}, {t * 8192}") if jj == 0 else None
        d = Ins(f"buffer_load_dwordx4 v{V_KVD}, {sr(srd)}, s{S_T0} offen offset:{jj * 256}{nt} lds", tag=("dma", kind, t, False))
        out.append((m0, so, d))
    return out


STAMP = [0]
V_STAMP = 19
S_STAMP = 90


def stamp_ins():
    if not OPT["stamps"]:
        return []
    n = STAMP[0]
    STAMP[0] += 1
    assert n < 64
    if OPT["stamps"] == 2:
        return [Ins(f"v_writelane_b32 v{V_STAMP}, s{S_STAMP}, {n}"), Ins(f"s_memrealtime s[{S_STAMP}:{S_STAMP + 1}]")]
    return [Ins(f"v_writelane_b32 v{V_STAMP}, s{S_STAMP}, {n}"), Ins(f"s_memtime s[{S_STAMP}:{S_STAMP + 1}]")]


def sync_ins(needs):
    w = Ins("s_waitcnt vmcnt(0) lgkmcnt(0)", tag=("sync", tuple(needs)))
    return [w, Ins("s_barrier")] + stamp_ins()


def stamp_dump(slot, wgreg_mul, wv):
    if not OPT["stamps"]:
        return []
    t = [
        "s_waitcnt lgkmcnt(0)",
        "s_load_dwordx2 s[92:93], s[0:1], 96",
        "s_waitcnt lgkmcnt(0)",
        f"s_add_u32 s92, s92, {200 << 20}",
        "s_addc_u32 s93, s93, 0",
        f"s_mov_b32 s94, {4 << 20}",
        "s_mov_b32 s95, 0x20000",
        "s_lshl_b32 s96, s2, 2",
        f"s_add_u32 s96, s96, s{wv}",
        "s_lshl_b32 s96, s96, 2",
        f"s_add_u32 s96, s96, {slot}",
        "s_lshl_b32 s96, s96, 8",
        "v_lshlrev_b32 v31, 2, v0",
        f"buffer_store_dword v{V_STAMP}, v31, s[92:95], s96 offen",
    ]
    return [Ins(x) for x in t]


def q_step(s):
    par = s & 1
    gaps = []
    for rb in range(6):
        for db in range(8):
            c = "0" if s == 0 else vr(acc(rb, db))
            gaps.append(Gap(Ins(f"{MFMA} {vr(acc(rb, db))}, {ar(A_KB[par] + 4 * db)}, {ar(A_VB[par] + 4 * rb)}, {c}")))
    if s < 19:
        reads = rd_w(s + 1, par ^ 1) + rd_x((s + 1) >> 1, (s + 1) & 1, par ^ 1)
        needs = [("W", s + 1, False), ("X", (s + 1) >> 1, False)]
    else:
        reads = rd_k(0) + rd_v(0)
        needs = [("K", 0, False), ("V", 0, False)]
    slots = [g for g in range(40) if g % 5 in (0, 2, 4)]
    for r, g in zip(reads, slots):
        gaps[g].mem.append(r)
    assert len(reads) <= len(slots)
    dm = []
    if s <= 14:
        dm += dma_w(s + 5)
    if 1 <= s <= 14:
        i = (s - 1) // 2 + 3
        x = dma_x(i)
        if (s - 1) % 2 == 0:
            dm += x[:3]
        else:
            m0, so, d = x[3]
            so = Ins(f"s_mov_b32 s{S_T0}, {64 * 1 * 1280 + i * 128}")
            dm += [(m0, so, d)] + x[4:]
    if s == 15:
        dm += dma_kv("K", 0) + dma_kv("V", 0)
    if s == 16:
        dm += dma_kv("K", 1)
    if s == 17:
        dm += dma_kv("V", 1) + dma_kv("K", 2)
    if s == 18:
        dm += dma_kv("V", 2) + dma_kv("K", 3)
    if s == 19:
        dm += dma_kv("V", 3)
    place_dmas(gaps, dm, [g for g in range(1, 47) if g % 5 in (1, 3)])
    return sync_ins(needs), gaps


def qk_mfmas(t, rb):
    par = t & 1
    sb = V_S + 8 * (rb & 1)
    out = []
    for kb in range(2):
        for ks in range(4):
            c = "0" if ks == 0 else vr(sb + 4 * kb)
            out.append(Ins(f"{MFMA} {vr(sb + 4 * kb)}, {ar(A_KB[par] + 16 * kb + 4 * ks)}, {ar(A_Q + 16 * rb + 4 * ks)}, {c}"))
    return out


def pv_mfmas(t, rb):
    par = t & 1
    p = V_P + 4 * (rb & 1)
    out = []
    for db in range(8):
        c = "0" if t == 0 else vr(acc(rb, db))
        out.append(Ins(f"{MFMA} {vr(acc(rb, db))}, {ar(A_VB[par] + 4 * db)}, {vr(p)}, {c}"))
    c = "0" if t == 0 else ar(A_L + 4 * rb)
    out.append(Ins(f"{MFMA} {ar(A_L + 4 * rb)}, {ar(A_ONE)}, {vr(p)}, {c}"))
    return out


def sm_exp(rb, i):
    r = V_S + 8 * (rb & 1) + i
    return Ins(f"v_exp_f32 v{r}, v{r}")


def sm_cvt(rb, i):
    r = V_S + 8 * (rb & 1) + 2 * i
    return Ins(f"v_cvt_pk_bf16_f32 v{V_P + 4 * (rb & 1) + i}, v{r}, v{r + 1}")


def a_step(t):
    gaps = []
    ds_slots = []
    free = []
    for j in range(6):
        base = len(gaps)
        first = (t == 0 and j == 0)
        for m in qk_mfmas(t, j):
            gaps.append(Gap(m))
        pt, prb = (t, j - 1) if j > 0 else (t - 1, 5)
        if not first:
            for m in pv_mfmas(pt, prb):
                gaps.append(Gap(m))
            gaps[base + 0].va.append(sm_exp(prb, 6))
            gaps[base + 1].va.append(sm_cvt(prb, 2))
            gaps[base + 2].va.append(sm_exp(prb, 7))
            gaps[base + 4].va.append(sm_cvt(prb, 3))
            gaps[base + 9].va.append(sm_exp(j, 0))
            gaps[base + 10].va.append(sm_exp(j, 1))
            gaps[base + 11].va.append(sm_cvt(j, 0))
            gaps[base + 12].va.append(sm_exp(j, 2))
            gaps[base + 13].va.append(sm_exp(j, 3))
            gaps[base + 14].va.append(sm_cvt(j, 1))
            gaps[base + 15].va.append(sm_exp(j, 4))
            gaps[base + 16].va.append(sm_exp(j, 5))
            if j < 5:
                ds_slots += [base + 1, base + 4, base + 6, base + 11, base + 14]
                free += [base + 3, base + 5, base + 7, base + 8]
            else:
                free += [base + 3, base + 5, base + 6, base + 7, base + 8]
        else:
            ds_slots += [base + 0, base + 2, base + 4, base + 5, base + 6]
            free += [base + 1, base + 3, base + 7]
            g = Gap(None)
            g.sc.append(Ins("s_nop 3"))
            for i in range(4):
                g.va.append(sm_exp(j, i))
            g.va += [sm_cvt(j, 0), sm_cvt(j, 1), sm_exp(j, 4), sm_exp(j, 5)]
            gaps.append(g)
    if t < 15:
        reads = rd_k(t + 1) + rd_v(t + 1)
        needs = [("K", t + 1, False), ("V", t + 1, False)]
    else:
        reads = rd_w(0, 0) + rd_x(0, 0, 0)
        needs = [("W", 0, True), ("X", 0, True)]
    assert len(reads) <= len(ds_slots)
    for r, g in zip(reads, ds_slots):
        gaps[g].mem.append(r)
    dm = []
    if t <= 11:
        dm = dma_kv("K", t + 4) + dma_kv("V", t + 4)
    elif t == 12:
        dm = dma_x(0, True)
    elif t == 13:
        dm = dma_w(0, True) + dma_w(1, True)
    elif t == 14:
        dm = dma_x(1, True) + dma_x(2, True)
    else:
        dm = dma_w(2, True) + dma_w(3, True) + dma_w(4, True)
    cand = []
    for g in free:
        if not cand or g - cand[-1] >= 4:
            cand.append(g)
    place_dmas(gaps, dm, cand)
    return sync_ins(needs), gaps


def a_drain():
    out = [sm_exp(5, 6), sm_exp(5, 7), sm_cvt(5, 2), sm_cvt(5, 3), Ins("s_nop 1")]
    out += pv_mfmas(15, 5)
    return out


def q_convert():
    out = [Ins("s_nop 7")]
    for rb in range(6):
        b = V_ACC + 32 * rb
        for i in range(16):
            out.append(Ins(f"v_mul_f32 v{b + 2 * i}, s{S_C}, v{b + 2 * i}"))
            out.append(Ins(f"v_mul_f32 v{b + 2 * i + 1}, s{S_C}, v{b + 2 * i + 1}"))
            out.append(Ins(f"v_cvt_pk_bf16_f32 v{b + 2 * i}, v{b + 2 * i}, v{b + 2 * i + 1}"))
            out.append(Ins(f"v_accvgpr_write_b32 a{A_Q + 16 * rb + i}, v{b + 2 * i}"))
    return out


def o_epilogue():
    out = []
    for rb in range(6):
        b = V_ACC + 32 * rb
        t = V_T2 + rb
        out.append(Ins(f"v_accvgpr_read_b32 v{t}, a{A_L + 4 * rb}"))
        out.append(Ins(f"v_subrev_u32 v{V_T}, s{S_LO}, v{t}"))
        out.append(Ins(f"v_rcp_f32 v{t}, v{t}"))
        out.append(Ins(f"v_cmp_le_u32 vcc, s{S_RNG}, v{V_T}"))
        out.append(Ins("s_nop 0"))
        out.append(Ins(f"s_or_b64 {sr(S_BAD, 2)}, {sr(S_BAD, 2)}, vcc"))
        for ks in range(4):
            for i in range(4 * ks, 4 * ks + 4):
                out.append(Ins(f"v_mul_f32 v{b + 2 * i}, v{t}, v{b + 2 * i}"))
                out.append(Ins(f"v_mul_f32 v{b + 2 * i + 1}, v{t}, v{b + 2 * i + 1}"))
                out.append(Ins(f"v_cvt_pk_bf16_f32 v{b + i}, v{b + 2 * i}, v{b + 2 * i + 1}"))
            out.append(Ins(f"s_add_u32 s{S_T0}, s{S_OOFF}, {ks * 192 * 1024 + (rb >> 2) * 4096}"))
            out.append(Ins(f"buffer_store_dwordx4 {vr(b + 4 * ks)}, v{V_OST}, {sr(S_O)}, s{S_T0} offen offset:{(rb & 3) * 1024} {OPT['fst'].replace('+', ' ')}", tag=("store",)))
    return fix_hazards(out)


def k1_prologue():
    L = []
    a = lambda s, tag=None: L.append(Ins(s, tag))
    a("s_cmp_ge_u32 s2, 256")
    a("s_cbranch_scc1 K1_END")
    if OPT["stamps"]:
        a(f"{'s_memrealtime' if OPT['stamps'] == 2 else 's_memtime'} s[{S_STAMP}:{S_STAMP + 1}]")
        a("s_memrealtime s[98:99]")
        a(f"v_mov_b32 v{V_STAMP}, 0")
    a("s_load_dwordx2 s[48:49], s[0:1], 0")
    a("s_load_dwordx2 s[50:51], s[0:1], 8")
    a("s_load_dwordx2 s[52:53], s[0:1], 16")
    a("s_load_dwordx2 s[54:55], s[0:1], 24")
    a("s_load_dwordx2 s[56:57], s[0:1], 40")
    a("s_load_dwordx2 s[58:59], s[0:1], 48")
    a("s_load_dwordx2 s[60:61], s[0:1], 56")
    a("s_load_dwordx2 s[62:63], s[0:1], 64")
    a("s_load_dwordx2 s[64:65], s[0:1], 96")
    a("v_lshrrev_b32 v20, 6, v0")
    a("v_and_b32 v0, 63, v0")
    a(f"v_readfirstlane_b32 s{S_WV}, v20")
    a("s_nop 0")
    a(f"s_lshr_b32 s{S_HP}, s{S_WV}, 1")
    a(f"s_and_b32 s{S_RH}, s{S_WV}, 1")
    a("s_and_b32 s66, s2, 7")
    a("s_lshr_b32 s67, s2, 3")
    a("s_lshr_b32 s68, s66, 2")
    if not OPT["map84"]:
        a("s_and_b32 s69, s66, 3")
        a("s_lshl_b32 s69, s69, 2")
        a("s_lshr_b32 s70, s67, 3")
        a("s_add_u32 s69, s69, s70")
        a("s_and_b32 s70, s67, 7")
    else:
        a("s_and_b32 s69, s66, 1")
        a("s_lshl_b32 s69, s69, 3")
        a("s_lshr_b32 s70, s67, 2")
        a("s_add_u32 s69, s69, s70")
        a("s_and_b32 s70, s66, 2")
        a("s_lshl_b32 s70, s70, 1")
        a("s_and_b32 s71, s67, 3")
        a("s_add_u32 s70, s70, s71")
    a("v_lshrrev_b32 v20, 3, v0")
    a("v_and_b32 v21, 4, v20")
    a("v_and_b32 v22, 1, v20")
    a("v_lshl_add_u32 v21, v22, 1, v21")
    a("v_bfe_u32 v22, v20, 1, 1")
    a("v_add_u32 v21, v21, v22")
    a("v_lshlrev_b32 v21, 3, v21")
    a(f"s_lshl_b32 s71, s{S_WV}, 1")
    a("v_add_u32 v21, s71, v21")
    a("v_mul_u32_u24 v21, 1280, v21")
    a("v_and_b32 v22, 7, v0")
    a(f"v_lshl_add_u32 v{V_XD}, v22, 4, v21")
    a("v_lshrrev_b32 v20, 5, v0")
    a("v_lshlrev_b32 v20, 15, v20")
    a(f"s_lshl_b32 s71, s{S_WV}, 16")
    a("v_add_u32 v20, s71, v20")
    a("v_and_b32 v21, 31, v0")
    a(f"v_lshl_add_u32 v{V_WD}, v21, 4, v20")
    a("v_lshrrev_b32 v23, 4, v0")
    a("v_lshlrev_b32 v20, 11, v23")
    a(f"s_lshl_b32 s71, s{S_RH}, 10")
    a("v_add_u32 v20, s71, v20")
    a("v_and_b32 v21, 15, v0")
    a(f"v_lshl_add_u32 v{V_KVD}, v21, 4, v20")
    a(f"v_lshlrev_b32 v{V_OST}, 4, v0")
    a("v_and_b32 v24, 7, v0")
    a("v_bfe_u32 v25, v0, 3, 1")
    a("v_lshlrev_b32 v26, 4, v23")
    a("v_lshl_add_u32 v26, v25, 8, v26")
    a(f"v_mul_u32_u24 v20, {XBLK}, v24")
    a("v_add_u32 v20, v20, v26")
    a(f"s_mul_i32 s71, s{S_RH}, 1536")
    a(f"v_add_u32 v{V_XR}, s71, v20")
    a(f"v_mul_u32_u24 v20, {KVB}, v24")
    a("v_add_u32 v20, v20, v26")
    a(f"s_mul_i32 s72, s{S_HP}, {KVH}")
    a(f"v_add_u32 v{V_KR}, s72, v20")
    a("v_bfe_u32 v24, v0, 2, 2")
    a("v_and_b32 v25, 3, v0")
    a(f"v_mul_u32_u24 v20, {WG_}, v23")
    a(f"v_mul_u32_u24 v21, {WR}, v24")
    a("v_add_u32 v20, v20, v21")
    a("v_lshl_add_u32 v20, v25, 4, v20")
    a(f"s_lshl_b32 s71, s{S_HP}, 8")
    a(f"v_add_u32 v{V_WR}, s71, v20")
    a("v_and_b32 v20, 1, v23")
    a("v_lshl_add_u32 v20, v20, 2, v24")
    a(f"v_mul_u32_u24 v20, {KVB}, v20")
    a("v_lshrrev_b32 v21, 1, v23")
    a("v_lshl_add_u32 v20, v21, 8, v20")
    a("v_lshl_add_u32 v20, v25, 3, v20")
    a(f"v_add_u32 v{V_VR}, s72, v20")
    for b in (V_XR, V_WR, V_KR, V_VR):
        a(f"v_add_u32 v{b + 1}, 0x10000, v{b}")
        a(f"v_add_u32 v{b + 2}, 0x20000, v{b}")
    a(f"v_mov_b32 v{V_OOB}, 0x7ffffff0")
    a("v_mov_b32 v20, 0x3f803f80")
    for i in range(4):
        a(f"v_accvgpr_write_b32 a{A_ONE + i}, v20")
    a(f"s_mul_i32 s{S_M0X}, s{S_WV}, {2 * XBLK}")
    a(f"s_mul_i32 s{S_M0W}, s{S_WV}, {WG_}")
    a(f"s_mul_i32 s71, s{S_RH}, {4 * KVB}")
    a(f"s_add_u32 s{S_M0KV}, s72, s71")
    a(f"s_mov_b32 s{S_C}, {hex(f2u(math.log2(math.e) / math.sqrt(128.0)))}")
    a(f"s_mov_b32 s{S_C + 1}, s{S_C}")
    lo, hi = f2u(2.0 ** -20), f2u(2.0 ** 40)
    a(f"s_mov_b32 s{S_LO}, {hex(lo)}")
    a(f"s_mov_b32 s{S_RNG}, {hex(hi - lo)}")
    a(f"s_mov_b32 s{S_BADU}, 0")
    a(f"s_mov_b32 s{S_U}, 0")
    a(f"s_mov_b32 s{S_WCOLN}, 0")
    if OPT["kvrot"] == 0:
        a(f"s_mov_b32 s{S_ROT}, 0")
    elif OPT["kvrot"] == 1:
        a(f"s_lshr_b32 s{S_ROT}, s2, 3")
        a(f"s_lshl_b32 s{S_ROT}, s{S_ROT}, 1")
        a(f"s_add_u32 s{S_ROT}, s{S_ROT}, s{S_HP}")
        a(f"s_and_b32 s{S_ROT}, s{S_ROT}, 15")
        a(f"s_lshl_b32 s{S_ROT}, s{S_ROT}, 13")
    else:
        a(f"s_lshr_b32 s{S_ROT}, s2, 4")
        a(f"s_xor_b32 s{S_ROT}, s{S_ROT}, s2")
        a(f"s_lshl_b32 s71, s{S_HP}, 3")
        a(f"s_xor_b32 s{S_ROT}, s{S_ROT}, s71")
        a(f"s_and_b32 s{S_ROT}, s{S_ROT}, 15")
        a(f"s_lshl_b32 s{S_ROT}, s{S_ROT}, 13")
    a("s_waitcnt lgkmcnt(0)")
    a("s_cmp_eq_u32 s68, 0")
    a("s_cselect_b64 s[48:49], s[48:49], s[56:57]")
    a("s_cselect_b64 s[50:51], s[50:51], s[58:59]")
    a("s_cselect_b64 s[52:53], s[52:53], s[60:61]")
    a("s_cselect_b64 s[54:55], s[54:55], s[62:63]")
    a("s_mul_i32 s71, s69, 245760")
    a(f"s_add_u32 s{S_X}, s48, s71")
    a(f"s_addc_u32 s{S_X + 1}, s49, 0")
    a(f"s_mov_b32 s{S_X + 2}, 245760")
    a(f"s_mov_b32 s{S_X + 3}, 0x20000")
    a("s_lshl_b32 s71, s70, 10")
    a(f"s_add_u32 s{S_W}, s54, s71")
    a(f"s_addc_u32 s{S_W + 1}, s55, 0")
    a(f"s_sub_u32 s{S_W + 2}, {640 * 8192}, s71")
    a(f"s_mov_b32 s{S_W + 3}, 0x20000")
    a("s_lshl_b32 s71, s69, 5")
    a("s_lshl_b32 s72, s70, 2")
    a("s_add_u32 s71, s71, s72")
    a(f"s_add_u32 s71, s71, s{S_HP}")
    a("s_lshl_b32 s71, s71, 17")
    a(f"s_add_u32 s{S_K}, s50, s71")
    a(f"s_addc_u32 s{S_K + 1}, s51, 0")
    a(f"s_mov_b32 s{S_K + 2}, {3 * 131072}")
    a(f"s_mov_b32 s{S_K + 3}, 0x20000")
    a(f"s_add_u32 s{S_V}, s52, s71")
    a(f"s_addc_u32 s{S_V + 1}, s53, 0")
    a(f"s_mov_b32 s{S_V + 2}, {3 * 131072}")
    a(f"s_mov_b32 s{S_V + 3}, 0x20000")
    a("s_lshl_b32 s71, s68, 7")
    a(f"s_add_u32 s72, s72, s{S_HP}")
    a("s_lshl_b32 s72, s72, 2")
    a("s_add_u32 s71, s71, s72")
    a("s_mul_i32 s71, s71, 192")
    a("s_mul_i32 s72, s69, 12")
    a("s_add_u32 s71, s71, s72")
    a(f"s_mul_i32 s72, s{S_RH}, 6")
    a("s_add_u32 s71, s71, s72")
    a("s_lshl_b32 s71, s71, 10")
    a(f"s_add_u32 s{S_O}, s64, s71")
    a(f"s_addc_u32 s{S_O + 1}, s65, 0")
    a(f"s_mov_b32 s{S_O + 2}, {(11 * 192 + 6) * 1024}")
    a(f"s_mov_b32 s{S_O + 3}, 0x20000")
    dm = dma_x(0, True) + dma_w(0, True) + dma_w(1, True) + dma_x(1, True) + dma_x(2, True) + dma_w(2, True) + dma_w(3, True) + dma_w(4, True)
    for m0, so, d in dm:
        L.append(m0)
        L.append(so if so is not None else Ins("s_nop 0"))
        L.append(d)
    L.extend(sync_ins([("W", 0, True), ("X", 0, True)]))
    L.extend(rd_w(0, 0) + rd_x(0, 0, 0))
    nd = 24
    if OPT["wotouch"]:
        a("s_load_dwordx2 s[76:77], s[0:1], 32")
        a("s_load_dwordx2 s[78:79], s[0:1], 72")
        a("s_waitcnt lgkmcnt(0)")
        a("s_cmp_eq_u32 s68, 0")
        a("s_cselect_b64 s[76:77], s[76:77], s[78:79]")
        a("s_and_b32 s71, s66, 3")
        a("s_lshl_b32 s71, s71, 5")
        a("s_add_u32 s71, s71, s67")
        a("s_lshl_b32 s71, s71, 2")
        a(f"s_add_u32 s71, s71, s{S_WV}")
        a("s_mul_i32 s71, s71, 10240")
        a("s_add_u32 s76, s76, s71")
        a("s_addc_u32 s77, s77, 0")
        a("s_mov_b32 s78, 10240")
        a("s_mov_b32 s79, 0x20000")
        a("v_lshlrev_b32 v20, 7, v0")
        a("s_mov_b32 s71, 8192")
        a(f"buffer_load_dword v{V_DUM}, v20, s[76:79], 0 offen", ("dummy",))
        a(f"buffer_load_dword v{V_DUM}, v20, s[76:79], s71 offen", ("dummy",))
        nd -= 2
    for i in range(nd):
        a(f"buffer_load_dword v{V_DUM}, v{V_OOB}, {sr(S_X)}, 0 offen", ("dummy",))
    return fix_hazards(L)


def k1_body():
    L = []
    est = 0
    L.append(Ins("K1_UNIT:"))
    L.append(Ins(f"s_mov_b32 s{S_WCOL}, s{S_WCOLN}"))
    L.append(Ins(f"s_add_u32 s{S_WCOLN}, s{S_WCOL}, 512"))
    L.append(Ins(f"s_lshl_b32 s{S_KV}, s{S_U}, 18"))
    L.append(Ins(f"s_or_b32 s{S_KV}, s{S_KV}, s{S_ROT}"))
    L.append(Ins(f"s_mul_i32 s{S_OOFF}, s{S_U}, {8 * 192 * 1024}"))
    L.append(Ins(f"s_mov_b64 {sr(S_BAD, 2)}, 0"))
    for s in range(20):
        sy, gaps = q_step(s)
        L += sy + flat(gaps)
        est += sum(g.cost() for g in gaps)
    if OPT["stamps"]:
        L += [Ins("s_waitcnt lgkmcnt(0)")] + stamp_ins()
    qc = q_convert()
    L += qc
    est += 4 * len(qc)
    L.append(Ins(f"s_cmp_eq_u32 s{S_U}, 1"))
    L.append(Ins(f"s_cselect_b32 s{S_X + 2}, 0, s{S_X + 2}"))
    L.append(Ins(f"s_cselect_b32 s{S_W + 2}, 0, s{S_W + 2}"))
    for t in range(16):
        sy, gaps = a_step(t)
        L += sy + flat(gaps)
        est += sum(g.cost() for g in gaps)
    L += a_drain()
    L.append(Ins("s_nop 7"))
    if OPT["stamps"]:
        L += [Ins("s_waitcnt lgkmcnt(0)")] + stamp_ins()
    ep = o_epilogue()
    L += ep
    est += 4 * len(ep) + 200
    if OPT["stamps"]:
        L += [Ins("s_waitcnt lgkmcnt(0)")] + stamp_ins() + [Ins("s_memrealtime s[100:101]"), Ins("s_waitcnt lgkmcnt(0)")] + stamp_ins()
        L += [Ins(f"v_writelane_b32 v{V_STAMP}, s98, 62"), Ins(f"v_writelane_b32 v{V_STAMP}, s100, 63")]
        L += stamp_dump(f"s{S_U}", 4, S_WV)
    L.append(Ins(f"s_cmp_lg_u64 {sr(S_BAD, 2)}, 0"))
    L.append(Ins(f"s_cselect_b32 s{S_T0}, 1, 0"))
    L.append(Ins(f"s_lshl_b32 s{S_T0}, s{S_T0}, s{S_U}"))
    L.append(Ins(f"s_or_b32 s{S_BADU}, s{S_BADU}, s{S_T0}"))
    L.append(Ins(f"s_add_u32 s{S_U}, s{S_U}, 1"))
    L.append(Ins(f"s_cmp_lt_u32 s{S_U}, 2"))
    L.append(Ins("s_cbranch_scc1 K1_UNIT"))
    print(f"k1 body: {len(L)} instructions, estimated {est} cycles per unit", file=sys.stderr)
    return L


def resolve_waits(segments):
    seq = []
    for pi, seg in enumerate(segments):
        for x in seg:
            seq.append((pi, x))
    best = {}
    issued = []
    for pi, x in seq:
        if x.label:
            continue
        if x.kind == "vmem":
            if x.tag and x.tag[0] == "dma":
                issued.append((pi + (1 if x.tag[3] else 0), x.tag[1], x.tag[2]))
            else:
                issued.append(None)
        if x.tag and x.tag[0] == "sync":
            last = -1
            for kind, idx, nxt in x.tag[1]:
                key = (pi + (1 if nxt else 0), kind, idx)
                pos = [i for i, k in enumerate(issued) if k == key]
                assert pos, ("missing dma", key)
                last = max(last, pos[-1])
            n = min(len(issued) - 1 - last, 63)
            best[id(x)] = min(best.get(id(x), 99), n)
    for pi, x in seq:
        if not x.label and x.tag and x.tag[0] == "sync":
            x.text = f"s_waitcnt vmcnt({best[id(x)]}) lgkmcnt(0)"
            x.vm = best[id(x)]


def check_lds_k1(segments):
    def region(kind, idx):
        if kind == "X":
            return xslot(idx), xslot(idx) + XSZ
        if kind == "W":
            return wslot(idx), wslot(idx) + WSZ
        if kind == "K":
            return kcell(idx), kcell(idx) + CELL
        return vcell(idx), vcell(idx) + CELL
    total_reads = {"X": 12, "W": 16, "K": 8, "V": 16}
    live = {}
    for pi, seg in enumerate(segments):
        for x in seg:
            if x.label:
                continue
            if x.mn == "s_barrier":
                for k, v in live.items():
                    v[3] = v[2]
            if x.tag and x.tag[0] == "sync":
                for kind, idx, nxt in x.tag[1]:
                    live[(pi + (1 if nxt else 0), kind, idx)][4] = True
            if x.tag and x.tag[0] == "dma":
                key = (pi + (1 if x.tag[3] else 0), x.tag[1], x.tag[2])
                lo, hi = region(x.tag[1], x.tag[2])
                assert hi <= LDS1
                if key not in live:
                    for k, v in list(live.items()):
                        if v[0] < hi and lo < v[1]:
                            assert v[3] == total_reads[k[1]], ("LDS overwrite", key, k, v)
                            del live[k]
                    live[key] = [lo, hi, 0, 0, False]
            if x.tag and x.tag[0] == "rd":
                cands = [k for k in live if k[1] == x.tag[1] and k[2] == x.tag[2]]
                assert len(cands) == 1, (x.tag, cands)
                assert live[cands[0]][4], ("read before visible", x.tag)
                live[cands[0]][2] += 1


def gen_k1():
    pro = k1_prologue()
    body = k1_body()
    resolve_waits([pro, body, body])
    check_lds_k1([pro, body, body])
    errs = check_hazards(pro + body + body, "k1") + check_counters(pro + body + body, "k1")
    errs = [e for e in errs if f"('v', {V_DUM})" not in e]
    for e in errs[:20]:
        print(e, file=sys.stderr)
    assert not errs, f"{len(errs)} problems"
    tail = [Ins("s_waitcnt vmcnt(0) lgkmcnt(0)"), Ins("K1_END:"), Ins("s_endpgm")]
    return pro + body + tail


K2_BASE = 1024
K2_D = 8
LDS2 = K2_BASE + K2_D * CELL
T_O, T_W, T_OUT = 8, 12, 16
T_M0, T_SO, T_SW, T_CNT, T_T0, T_T1 = 20, 21, 22, 23, 24, 25
T_WV, T_MH, T_KH = 26, 27, 28
U_OA, U_OB, U_WD, U_RD = 1, 2, 3, 4
U_X, U_ST = 8, 9
U_T = 12
U_ACC = 64
U_RX = 192
B_O = 0
B_W = [128, 160]


def k2_rd(s):
    out = []
    par = s & 1
    for nb in range(8):
        for hh in range(2):
            v, o = ds_addr(U_RD, K2_BASE + (s % K2_D) * CELL + hh * 512 + nb * 32)
            out.append(Ins(f"ds_read_b64_tr_b16 {ar(B_W[par] + 4 * nb + 2 * hh, 2)}, {v} offset:{o}", tag=("rd", "W", s)))
    return out


def k2_dma(s, rel, ep):
    out = []
    for jj in range(4):
        m0 = Ins(f"s_add_u32 m0, s{T_M0}, {K2_BASE + (s % K2_D) * CELL + jj * (KVB - 1280)}")
        so = Ins(f"s_add_u32 s{T_T0}, s{T_SW}, {rel * 40960}") if jj == 0 else None
        d = Ins(f"buffer_load_dwordx4 v{U_WD}, {sr(T_W)}, s{T_T0} offen offset:{jj * 1280} {OPT['fwo']} lds", tag=("dma", "W", s % K2_D, ep))
        out.append((m0, so, d))
    return out


def k2_oload(s, rel, ep):
    out = []
    for i in range(4):
        so = Ins(f"s_add_u32 s{T_T1}, s{T_SO}, {rel * 192 * 1024}") if i == 0 else None
        d = Ins(f"buffer_load_dwordx4 {ar(B_O + 16 * (s % 8) + 4 * i)}, v{U_OA if i < 2 else U_OB}, {sr(T_O)}, s{T_T1} offen offset:{(i & 1) * 1024} {OPT['fo2'].replace('+', ' ')}",
                tag=("dma", "O", s % 8, ep))
        out.append((so, d))
    return out


def k2_step(s):
    par = s & 1
    gaps = []
    for i in range(4):
        for nb in range(8):
            d = vr(U_ACC + 32 * i + 4 * nb)
            gaps.append(Gap(Ins(f"{MFMA} {d}, {ar(B_W[par] + 4 * nb)}, {ar(B_O + 16 * (s % 8) + 4 * i)}, {d}")))
    reads = k2_rd(s + 1)
    slots = [0, 1, 2, 4, 5, 6, 8, 9, 10, 12, 13, 14, 16, 17, 18, 20]
    for r, g in zip(reads, slots):
        gaps[g].mem.append(r)
    place_dmas(gaps, k2_dma(s + 8, s + 8, True), [3, 11, 19, 27])
    for (so, d), g in zip(k2_oload(s + 7, s + 7, s + 7 >= 8), [7, 15, 23, 30]):
        if so is not None:
            gaps[g].sc.insert(0, so)
        gaps[g].mem.append(d)
    needs = [("W", (s + 1) % K2_D, s + 1 >= 8), ("O", s % 8, False)]
    sy = [Ins("s_waitcnt vmcnt(0) lgkmcnt(0)", tag=("sync", tuple(needs))), Ins("s_barrier")]
    if OPT["stamps"] and s % 2 == 0:
        sy += [Ins(f"v_mov_b32 v30, s{S_STAMP}"), Ins(f"{'s_memrealtime' if OPT['stamps'] == 2 else 's_memtime'} s[{S_STAMP}:{S_STAMP + 1}]"), Ins("v_cmp_eq_u32 vcc, s97, v0"),
               Ins("s_add_u32 s97, s97, 1"), Ins("s_nop 0"), Ins(f"v_cndmask_b32 v{V_STAMP}, v{V_STAMP}, v30, vcc")]
    return sy, gaps


def gen_k2():
    L = []
    a = lambda s, tag=None: L.append(Ins(s, tag))
    a("s_cmp_ge_u32 s2, 240")
    a("s_cbranch_scc1 K2_END")
    STAMP[0] = 0
    if OPT["stamps"]:
        a(f"{'s_memrealtime' if OPT['stamps'] == 2 else 's_memtime'} s[{S_STAMP}:{S_STAMP + 1}]")
        a("s_memrealtime s[98:99]")
        a(f"v_mov_b32 v{V_STAMP}, 0")
    a("s_load_dwordx2 s[48:49], s[0:1], 32")
    a("s_load_dwordx2 s[50:51], s[0:1], 72")
    a("s_load_dwordx2 s[52:53], s[0:1], 80")
    a("s_load_dwordx2 s[54:55], s[0:1], 96")
    a("v_lshrrev_b32 v20, 6, v0")
    a("v_and_b32 v0, 63, v0")
    a(f"v_readfirstlane_b32 s{T_WV}, v20")
    a("s_nop 0")
    a(f"s_lshr_b32 s{T_KH}, s{T_WV}, 1")
    a(f"s_and_b32 s{T_MH}, s{T_WV}, 1")
    a("s_and_b32 s56, s2, 7")
    a("s_lshr_b32 s57, s2, 3")
    a("s_lshr_b32 s58, s56, 2")
    a("s_mul_i32 s59, s57, 52")
    a("s_lshr_b32 s59, s59, 8")
    a("s_mul_i32 s60, s59, 5")
    a("s_sub_u32 s60, s57, s60")
    a("s_and_b32 s61, s56, 3")
    a("s_mul_i32 s61, s61, 6")
    a("s_add_u32 s59, s59, s61")
    a("v_lshlrev_b32 v20, 4, v0")
    a(f"s_lshl_b32 s61, s{T_KH}, 11")
    a(f"v_add_u32 v{U_OA}, s61, v20")
    a(f"v_xor_b32 v{U_OB}, 2048, v{U_OA}")
    a("v_lshrrev_b32 v23, 4, v0")
    a(f"v_mul_u32_u24 v21, {8 * 1280}, v23")
    a(f"s_mul_i32 s61, s{T_MH}, {4 * 1280}")
    a("v_add_u32 v21, s61, v21")
    a("v_and_b32 v22, 15, v0")
    a(f"v_lshl_add_u32 v{U_WD}, v22, 4, v21")
    a("v_bfe_u32 v24, v0, 2, 2")
    a("v_and_b32 v25, 3, v0")
    a("v_and_b32 v21, 1, v23")
    a("v_lshl_add_u32 v21, v21, 2, v24")
    a(f"v_mul_u32_u24 v21, {KVB}, v21")
    a("v_lshrrev_b32 v26, 1, v23")
    a("v_lshl_add_u32 v21, v26, 8, v21")
    a("v_lshl_add_u32 v21, v25, 3, v21")
    a(f"s_mul_i32 s62, s{T_KH}, {KVH}")
    a(f"v_add_u32 v{U_RD}, s62, v21")
    a(f"v_add_u32 v{U_RD + 1}, 0x10000, v{U_RD}")
    a(f"v_add_u32 v{U_RD + 2}, 0x20000, v{U_RD}")
    a(f"s_mul_i32 s61, s{T_MH}, {4 * KVB}")
    a(f"s_add_u32 s{T_M0}, s62, s61")
    a(f"s_lshl_b32 s61, s{T_WV}, 14")
    a(f"v_add_u32 v{U_X}, s61, v20")
    a("v_mul_u32_u24 v21, 2560, v22")
    a(f"v_lshl_add_u32 v{U_ST}, v23, 3, v21")
    a("s_waitcnt lgkmcnt(0)")
    a("s_cmp_eq_u32 s58, 0")
    a("s_cselect_b64 s[48:49], s[48:49], s[50:51]")
    a("s_lshl_b32 s61, s58, 7")
    a(f"s_lshl_b32 s62, s{T_KH}, 6")
    a("s_add_u32 s61, s61, s62")
    a("s_mul_i32 s61, s61, 192")
    a("s_lshl_b32 s62, s59, 3")
    a("s_add_u32 s61, s61, s62")
    a(f"s_lshl_b32 s62, s{T_MH}, 2")
    a("s_add_u32 s61, s61, s62")
    a("s_lshl_b32 s61, s61, 10")
    a(f"s_add_u32 s{T_O}, s54, s61")
    a(f"s_addc_u32 s{T_O + 1}, s55, 0")
    a(f"s_mov_b32 s{T_O + 2}, {(63 * 192 + 4) * 1024}")
    a(f"s_mov_b32 s{T_O + 3}, 0x20000")
    a(f"s_mul_i32 s61, s{T_KH}, {2048 * 1280}")
    a("s_lshl_b32 s62, s60, 8")
    a("s_add_u32 s61, s61, s62")
    a(f"s_add_u32 s{T_W}, s48, s61")
    a(f"s_addc_u32 s{T_W + 1}, s49, 0")
    a(f"s_mov_b32 s{T_W + 2}, {2047 * 1280 + 256}")
    a(f"s_mov_b32 s{T_W + 3}, 0x20000")
    a("s_lshl_b32 s61, s59, 7")
    a(f"s_lshl_b32 s63, s{T_MH}, 6")
    a("s_add_u32 s61, s61, s63")
    a(f"s_lshl_b32 s63, s{T_KH}, 5")
    a("s_add_u32 s61, s61, s63")
    a("s_mul_i32 s61, s61, 2560")
    a("s_mul_i32 s63, s58, 1280")
    a("s_add_u32 s61, s61, s63")
    a("s_add_u32 s61, s61, s62")
    a(f"s_add_u32 s{T_OUT}, s52, s61")
    a(f"s_addc_u32 s{T_OUT + 1}, s53, 0")
    a(f"s_mov_b32 s{T_OUT + 2}, {31 * 2560 + 256}")
    a(f"s_mov_b32 s{T_OUT + 3}, 0x20000")
    a(f"s_mov_b32 s{T_SO}, 0")
    a(f"s_mov_b32 s{T_SW}, 0")
    for s in range(-8, 0):
        dm = k2_dma(s + 8, s + 8, True)
        ol = k2_oload(s + 7, s + 7, True) if s + 7 >= 0 else [None] * 4
        for (m0, so, d), o in zip(dm, ol):
            L.append(m0)
            L.append(so if so is not None else Ins("s_nop 0"))
            L.append(d)
            if o is not None:
                if o[0] is not None:
                    L.append(o[0])
                L.append(o[1])
    for i in range(128):
        a(f"v_mov_b32 v{U_ACC + i}, 0")
    L.extend(sync_ins([("W", 0, True)]))
    L.extend(k2_rd(0))
    a(f"s_mov_b32 s{T_CNT}, 0")
    if OPT["stamps"]:
        a("s_mov_b32 s97, 1")
    pro = fix_hazards(L)

    body = [Ins("K2_LOOP:")]
    est = 0
    for s in range(8):
        sy, gaps = k2_step(s)
        if s == 7:
            gaps[28].sc.append(Ins(f"s_add_u32 s{T_CNT}, s{T_CNT}, 1"))
            gaps[31].sc.append(Ins(f"s_add_u32 s{T_SO}, s{T_SO}, {8 * 192 * 1024}"))
            gaps[31].sc.append(Ins(f"s_add_u32 s{T_SW}, s{T_SW}, {8 * 40960}"))
            gaps[31].sc.append(Ins(f"s_cmp_lt_u32 s{T_CNT}, 8"))
        body += sy + flat(gaps)
        est += sum(g.cost() for g in gaps)
    body.append(Ins("s_cbranch_scc1 K2_LOOP"))
    print(f"k2 body: {len(body)} instructions, estimated {est} cycles per 8 steps", file=sys.stderr)

    E = []
    a = lambda s, tag=None: E.append(Ins(s, tag))
    a("s_waitcnt vmcnt(0) lgkmcnt(0)")
    a("s_barrier")
    STAMP[0] = 33
    E.extend(stamp_ins())
    if OPT["stamps"]:
        a("s_waitcnt lgkmcnt(0)")
        E.extend(stamp_ins())
        a("s_waitcnt lgkmcnt(0)")
    a("s_nop 7")
    for i in range(16):
        a(f"ds_write_b128 v{U_X}, {vr(U_ACC + 64 + 4 * i)} offset:{i * 1024}")
    a(f"v_xor_b32 v{U_X}, 0x8000, v{U_X}")
    a("s_waitcnt lgkmcnt(0)")
    a("s_barrier")
    for i in range(16):
        a(f"ds_read_b128 {vr(U_RX + 4 * i)}, v{U_X} offset:{i * 1024}")
        if i == 7:
            a("s_waitcnt lgkmcnt(4)")
    for i in range(2):
        for nb in range(8):
            k = 8 * i + nb
            a(f"s_waitcnt lgkmcnt({min(15 - k, 12)})")
            b = U_ACC + 32 * i + 4 * nb
            for r in range(4):
                a(f"v_add_f32 v{b + r}, v{b + r}, v{U_RX + 4 * k + r}")
            a(f"v_cvt_pk_bf16_f32 v{b}, v{b}, v{b + 1}")
            a(f"v_cvt_pk_bf16_f32 v{b + 1}, v{b + 2}, v{b + 3}")
            if nb == 0:
                a(f"s_mov_b32 s{T_T0}, {i * 16 * 2560}")
            a(f"buffer_store_dwordx2 {vr(b, 2)}, v{U_ST}, {sr(T_OUT)}, s{T_T0} offen offset:{nb * 32} {OPT['fout']}")
    a("s_waitcnt vmcnt(0)")
    if OPT["stamps"]:
        E.extend(stamp_ins() + [Ins("s_memrealtime s[100:101]"), Ins("s_waitcnt lgkmcnt(0)")] + stamp_ins())
        E.extend([Ins(f"v_writelane_b32 v{V_STAMP}, s98, 62"), Ins(f"v_writelane_b32 v{V_STAMP}, s100, 63")])
        E.extend(stamp_dump(2, 4, T_WV))
        a("s_waitcnt vmcnt(0)")
    epi = fix_hazards(E)
    resolve_waits([pro, body, body, body])
    full = pro + body + body + epi
    errs = check_hazards(full, "k2") + check_counters(full, "k2")
    for e in errs[:20]:
        print(e, file=sys.stderr)
    assert not errs, f"{len(errs)} problems"
    return pro + body + epi + [Ins("K2_END:"), Ins("s_endpgm")]


def kernel_text(label, ins):
    out = [f".globl {label}", ".p2align 8", f".type {label},@function", f"{label}:"]
    for x in ins:
        if OPT["nomfma"] and x.kind == "mfma":
            out.append("    s_nop 1"); continue
        if OPT["nods"] and x.kind == "ds":
            out.append("    s_nop 0"); continue
        if OPT["novalu"] and x.mn in ("v_exp_f32", "v_cvt_pk_bf16_f32"):
            out.append("    s_nop 0"); continue
        out.append(x.text if x.label else "    " + x.text)
    return "\n".join(out)


def descriptor(label):
    return f""".p2align 6
.amdhsa_kernel {label}
  .amdhsa_next_free_vgpr 512
  .amdhsa_next_free_sgpr 102
  .amdhsa_accum_offset 256
  .amdhsa_group_segment_fixed_size 0
  .amdhsa_kernarg_size 104
  .amdhsa_user_sgpr_count 2
  .amdhsa_user_sgpr_kernarg_segment_ptr 1
  .amdhsa_system_sgpr_workgroup_id_x 1
.end_amdhsa_kernel"""


def main(path):
    ref = open(f"cdna_kernels/{NAME}.s.ref").read().splitlines()
    head = [l for l in ref if l.startswith(";") and "@launch" not in l and "Override launch" not in l and "grid=ceil" not in l]
    k1 = gen_k1()
    k2 = gen_k2()
    out = head + [
        f"; @launch kernel=attn_kernel grid=(256,1,1) block=(256,1,1) lds={LDS1}",
        f"; @launch kernel=oproj_kernel grid=(240,1,1) block=(256,1,1) lds={LDS2}",
        '.amdgcn_target "amdgcn-amd-amdhsa--gfx950"', ".text",
        kernel_text("attn_kernel", k1), kernel_text("oproj_kernel", k2),
        '.section .rodata,"a"', descriptor("attn_kernel"), descriptor("oproj_kernel"), ""]
    open(path, "w").write("\n".join(out))


if __name__ == "__main__":
    main(sys.argv[1] if len(sys.argv) > 1 else f"cdna_kernels/{NAME}.s")
```
